```python
import torch

def _softmax(x, axis=-1):
    return torch.softmax(x, dim=axis)
def _gelu(x):
    return torch.nn.functional.gelu(x, approximate="tanh")
def _silu(x):
    return torch.nn.functional.silu(x)
def _sigmoid(x):
    return torch.sigmoid(x)
def _layernorm(x, axis=-1, eps=1e-5):
    m = x.mean(dim=axis, keepdim=True)
    v = x.var(dim=axis, keepdim=True, unbiased=False)
    return (x - m) / torch.sqrt(v + eps)
def _scatter_add(tgt, idx, src, axis=0):
    return tgt.clone().index_add_(axis, idx, src)
def _segment_sum(src, seg, n):
    out = torch.zeros((n,) + src.shape[1:], dtype=src.dtype)
    return out.index_add_(0, seg, src)
def _pad(x, pw):
    flat = tuple(v for pair in reversed(pw) for v in pair)
    return torch.nn.functional.pad(x, flat)

kernel_name = 'sequential_preLN__linear_kernel_hedgehog__dense_activation_gelu__prompt'

def setup_inputs():

    _w = (lambda a: (lambda t: t.to(torch.bfloat16) if t.is_floating_point() else t)(torch.as_tensor(a)))
    def _A_setup():
        B, S, D, H = 1, 2048, 512, 32
        Dh = D // H
        return {
            "x": _w((lambda *s: torch.randn(*s, dtype=torch.bfloat16) * 0.05)(B, S, D)),
            "wqkv": _w((lambda *s: torch.randn(*s, dtype=torch.bfloat16) * 0.2)(D, 3 * D)),
            "w_phi": _w((lambda *s: torch.randn(*s, dtype=torch.bfloat16) * 0.2)(H, Dh, Dh) * (Dh ** -0.5)),
            "wo": _w((lambda *s: torch.randn(*s, dtype=torch.bfloat16) * 0.05)(D, D)),
        }
    _A_in = _A_setup()

    def _B_setup():
        B, S, D, F = 1, 2048, 512, 1792
        return {
            "x": _w((lambda *s: torch.randn(*s, dtype=torch.bfloat16) * 0.05)(B, S, D)),
            "w1": _w((lambda *s: torch.randn(*s, dtype=torch.bfloat16) * 3.2)(D, F) * (D ** -0.5)),
            "b1": _w((lambda *s: torch.randn(*s, dtype=torch.bfloat16) * 0.1)(F) * 0.01),
            "w2": _w((lambda *s: torch.randn(*s, dtype=torch.bfloat16) * 0.1)(F, D) * (F ** -0.5)),
            "b2": _w((lambda *s: torch.randn(*s, dtype=torch.bfloat16) * 0.1)(D) * 0.01),
        }
    _B_in = _B_setup()

    return {
        "A_x": _A_in["x"],
        "A_wqkv": _A_in["wqkv"],
        "A_w_phi": _A_in["w_phi"],
        "A_wo": _A_in["wo"],
        "B_x": _B_in["x"],
        "B_w1": _B_in["w1"],
        "B_b1": _B_in["b1"],
        "B_w2": _B_in["w2"],
        "B_b2": _B_in["b2"],
    }

def reference(A_x, A_wqkv, A_w_phi, A_wo, B_x, B_w1, B_b1, B_w2, B_b2):
    def _A_ref(x, wqkv, w_phi, wo):
        B, S, D = x.shape
        H = 32; Dh = D // H
        qkv = (lambda x, *d: x.permute(*d))((x @ wqkv).reshape(B, S, 3, H, Dh), 2, 0, 3, 1, 4)
        q, k, v = qkv[0], qkv[1], qkv[2]
        pq = torch.einsum("bhsd,hdf->bhsf", q, w_phi)
        pk = torch.einsum("bhsd,hdf->bhsf", k, w_phi)
        phi_q = torch.concatenate([_softmax(pq, axis=-1), _softmax(-pq, axis=-1)], axis=-1)
        phi_k = torch.concatenate([_softmax(pk, axis=-1), _softmax(-pk, axis=-1)], axis=-1)
        kv = torch.einsum("bhsf,bhsd->bhfd", phi_k, v)
        z  = torch.einsum("bhsf->bhf", phi_k)
        num = torch.einsum("bhqf,bhfd->bhqd", phi_q, kv)
        den = torch.einsum("bhqf,bhf->bhq", phi_q, z)[..., None] + 1e-6
        o = num / den
        return (lambda x, *d: x.permute(*d))(o, 0, 2, 1, 3).reshape(B, S, D) @ wo

    def _B_ref(x, w1, b1, w2, b2):
        h = torch.einsum("bsd,df->bsf", x, w1) + b1
        h = _gelu(h)
        return torch.einsum("bsf,fd->bsd", h, w2) + b2

    x = A_x
    h = x + _A_ref(_layernorm(x, axis=-1), A_wqkv, A_w_phi, A_wo)
    h2 = h + _B_ref(_layernorm(h, axis=-1), B_w1, B_b1, B_w2, B_b2)
    return h2
```

```python
import re

REG = re.compile(r'(?<![\w.])([vas])(?:\[(\d+):(\d+)\]|(\d+))(?![\w])')

def regs_of(op):
    out = []
    for m in REG.finditer(op):
        k = m.group(1)
        if m.group(2) is not None:
            out += [(k, i) for i in range(int(m.group(2)), int(m.group(3)) + 1)]
        else:
            out.append((k, int(m.group(4))))
    if re.search(r'\bvcc\b', op): out += [('s', 'vcc')]
    if re.search(r'\bm0\b', op): out += [('s', 'm0')]
    if re.search(r'\bexec\b', op): out += [('s', 'exec')]
    return out

TRANS = ('v_exp_f32', 'v_log_f32', 'v_rcp_f32', 'v_rsq_f32', 'v_sqrt_f32', 'v_sin_f32', 'v_cos_f32')

class Ins:
    def __init__(self, text):
        self.text = text
        t = text.split(';')[0].strip()
        self.is_label = t.endswith(':')
        self.is_dir = t.startswith('.')
        self.op = '' if (self.is_label or self.is_dir or not t) else t.split()[0]
        rest = t[len(self.op):].strip() if self.op else ''
        ops = [o.strip() for o in re.split(r',(?![^\[]*\])', rest)] if rest else []
        self.ops = ops
        op = self.op
        self.mfma = op.startswith('v_mfma')
        self.valu = op.startswith('v_') and not self.mfma
        self.salu = op.startswith('s_')
        self.ds = op.startswith('ds_')
        self.vmem = op.startswith('buffer_') or op.startswith('global_')
        self.dot = op.startswith('v_dot')
        self.trans = any(op.startswith(x) for x in TRANS)
        self.dpp = 'dpp' in op or 'row_' in t or 'quad_perm' in t
        self.permlane = op.startswith('v_permlane')
        self.branch = op.startswith('s_cbranch') or op == 's_branch'
        self.w, self.r = [], []
        self.passes = 0
        self.srcc = []
        self.ab = []
        self.stdata = []
        if not op: return
        R = [regs_of(o) for o in ops]
        flat = lambda l: [x for y in l for x in y]
        if self.mfma:
            self.passes = 8 if '32x32' in op else 4
            self.w = R[0]; self.ab = R[1] + R[2]; self.srcc = R[3]; self.r = self.ab + self.srcc
        elif self.permlane:
            self.w = R[0] + R[1]; self.r = R[0] + R[1]
        elif self.valu:
            self.w = R[0]; self.r = flat(R[1:])
            if op.startswith(('v_fmac', 'v_dot2c', 'v_mac')): self.r = self.r + R[0]
            if op.startswith(('v_add_co', 'v_addc_co', 'v_sub_co')): self.w = R[0] + R[1]; self.r = flat(R[2:])
            if op.startswith('v_cndmask') and len(ops) == 3: self.r = self.r + [('s', 'vcc')]
        elif self.ds:
            if op.startswith('ds_read'): self.w = R[0]; self.r = flat(R[1:])
            else: self.r = flat(R)
        elif self.vmem:
            lds = re.search(r'\blds\b', t) is not None
            self.lds_dma = lds
            if 'load' in op and not lds: self.w = R[0]; self.r = flat(R[1:])
            elif lds: self.r = flat(R) + [('s', 'm0')]
            else:
                self.r = flat(R)
                if op.startswith('global_store'): d = R[1]
                else: d = R[0]
                if len(d) >= 3: self.stdata = d
                if 'atomic' in op and re.search(r'\bsc0\b', t): self.w = R[0]
        elif self.salu:
            if op.startswith(('s_cmp', 's_cbranch', 's_branch', 's_waitcnt', 's_barrier', 's_nop', 's_sleep', 's_endpgm', 's_setprio', 's_bitcmp')):
                self.r = flat(R)
            else:
                self.w = R[0] if R else []; self.r = flat(R[1:])
    def states(self):
        if self.op == 's_nop': return int(self.ops[0]) + 1
        return 1 if self.op else 0

def need(p, c):
    n = 0
    pw = set(p.w)
    vw = {x for x in pw if x[0] in 'va'}
    sw = {x for x in pw if x[0] == 's'}
    cr = set(c.r); cw = set(c.w)
    if p.mfma:
        big = p.passes == 8
        if c.mfma:
            if vw & set(c.ab): n = max(n, 12 if big else 8)
            if vw & set(c.srcc):
                same = (p.w == c.srcc) and p.passes == c.passes
                if not same: n = max(n, 10 if big else 6)
            if vw & cw and not (p.w == c.w and p.w == c.srcc and p.passes == c.passes):
                n = max(n, 12 if big else 8)
        elif c.valu or c.ds or c.vmem:
            if vw & (cr | cw): n = max(n, 12 if big else 8)
        if c.valu and set(p.srcc) & cw: n = max(n, 7 if big else 3)
    if p.valu:
        if c.mfma and vw & cr: n = max(n, 2)
        if c.vmem and sw & cr: n = max(n, 5)
        if c.valu and sw & cr: n = max(n, 4 if c.op.startswith(('v_readlane', 'v_writelane')) else 2)
        if c.salu and sw & cr: n = max(n, 1 if not c.branch else 1)
        if c.op.startswith(('v_readlane', 'v_readfirstlane')) and vw & cr: n = max(n, 1)
        if (c.dpp or c.permlane) and vw & cr: n = max(n, 2)
        if p.trans and c.valu and not c.trans and vw & cr: n = max(n, 1)
        if p.trans and c.trans and vw & cr: n = max(n, 1)
        if p.dot and (c.valu or c.mfma or c.ds or c.vmem) and vw & (cr | cw):
            same_acc = c.dot and c.op == p.op and not (vw & set(x for o in c.ops[1:3] for x in regs_of(o)))
            if not same_acc: n = max(n, 3)
    if p.salu and ('s', 'm0') in pw and c.vmem and getattr(c, 'lds_dma', False): n = max(n, 1)
    if p.stdata and set(p.stdata) & cw: n = max(n, 2)
    return n

def pad(lines):
    out = []; hist = []
    added = 0
    for text in lines:
        i = Ins(text)
        if i.op:
            req = 0; dist = 0
            for p in reversed(hist):
                k = need(p, i) - dist
                if k > req: req = k
                dist += p.states()
                if dist >= 20: break
            if req > 0:
                nop = Ins(f"s_nop {req-1}")
                out.append(nop.text); hist.append(nop); added += 1
            hist.append(i)
            if len(hist) > 40: hist = hist[-40:]
        out.append(text)
    return out, added

class E:
    def __init__(self):
        self.lines = []; self.vmq = []; self.dsq = []; self.nl = 0
    def __call__(self, s):
        for l in s.split('\n'):
            l = l.strip()
            if l: self.lines.append(l)
    def label(self, b):
        self.nl += 1; return f"{b}_{self.nl}"
    def vm(self, tag, s):
        self(s); self.vmq.append(tag)
    def ds(self, tag, s):
        self(s); self.dsq.append(tag)
    def _cnt(self, q, tags):
        if isinstance(tags, str): tags = [tags]
        idx = [i for i, t in enumerate(q) if t in tags]
        if not idx: return None
        return len(q) - 1 - max(idx)
    def wait(self, vm=None, ds=None):
        parts = []
        if vm is not None:
            n = 0 if vm == 0 else self._cnt(self.vmq, vm)
            if n is not None:
                self.vmq = self.vmq[len(self.vmq) - n:] if n else []
                parts.append(f"vmcnt({min(n,63)})")
        if ds is not None:
            n = 0 if ds == 0 else self._cnt(self.dsq, ds)
            if n is not None:
                self.dsq = self.dsq[len(self.dsq) - n:] if n else []
                parts.append(f"lgkmcnt({min(n,15)})")
        if parts: self("s_waitcnt " + " ".join(parts))
    def text(self):
        lines, added = pad(self.lines)
        fmt = []
        for l in lines:
            fmt.append(l if (l.endswith(':') or l.startswith('.') or l.startswith(';')) else '    ' + l)
        return "\n".join(fmt) + "\n", added
```

```python
import sys, math, struct
from emit import E

NAME = "sequential_preLN__linear_kernel_hedgehog__dense_activation_gelu__prompt"

def f32(x): return "0x%08x" % struct.unpack("<I", struct.pack("<f", x))[0]

CNT, KVP, ZP, STATS, OB, HB, W2F, ACT, DIAG = 0, 0x100000, 0x200000, 0x210000, 0x300000, 0x500000, 0x700000, 0x900000, 0x1000000
WS_BYTES = 0x1100000
XS, XW = 0, 20480
RL = 81920
CS = 90112
CS1 = 90624
B1T = 91136
WPH = 92160
BIMG = 93184
WK, WV = 98304, 131072
WO = 98304
W1M, W1L = 0, 98304
RED = 0
LDS_BYTES = 163840
X, WQKV, WPHI, WOs, W1s, W2s, OUT, WS, DBG, B1s, B2s = [f"s[{4+4*i}:{7+4*i}]" for i in range(11)]
sWV, sJ, sRB, sRG, sM, sRH, sCB, sROT = "s48", "s49", "s50", "s51", "s52", "s53", "s54", "s55"
sONE = "s70"
T0, T1, T2, T3 = "s72", "s73", "s74", "s75"
LOG2E = 1.4426950408889634

def vr(b, n=4): return f"v[{b}:{b+n-1}]"
def ar(b, n=4): return f"a[{b}:{b+n-1}]"

class Gen:
    def __init__(self, diag=False, stop=None, opt=None):
        self.e = E(); self.diag = diag; self.stop = stop; self.nst = 0
        self.opt = dict(touch=True, codepf=True)
        if opt: self.opt.update(opt)

    def stamp(self):
        if not self.diag: return
        e = self.e
        e("s_memrealtime s[76:77]")
        e("s_waitcnt lgkmcnt(0)"); e.dsq = []
        e(f"s_mov_b32 s{80+self.nst}, s76")
        self.nst += 1

    def dma(self, tag, voff, srd, soff, m0=None, off=0):
        e = self.e
        if m0 is not None: e(f"s_mov_b32 m0, {m0}")
        e.vm(tag, f"buffer_load_dwordx4 {voff}, {srd}, {soff} offen" + (f" offset:{off}" if off else "") + " lds")

    def arrive(self, cnt_base, sidx, check_init=False):
        e = self.e
        e("s_barrier")
        l = e.label("L_arr")
        e(f"s_cmp_lg_u32 {sWV}, 0\ns_cbranch_scc1 {l}")
        e("s_mov_b64 exec, 1")
        if check_init:
            lp = e.label("L_init")
            e(f"s_mov_b32 {T2}, 0")
            e(f"{lp}:")
            e(f"v_cmp_ne_u32 vcc, 0, v14\ns_cbranch_vccnz {lp}_ok")
            e(f"s_add_u32 {T2}, {T2}, 1\ns_cmp_ge_u32 {T2}, 0x80000\ns_cbranch_scc1 {lp}_ok")
            e(f"buffer_load_dword v14, off, {DBG}, 0 sc1\ns_waitcnt vmcnt(0)\ns_branch {lp}")
            e(f"{lp}_ok:")
        e(f"s_lshl_b32 {T0}, {sidx}, 8\ns_add_u32 {T0}, {T0}, {cnt_base}")
        e("v_mov_b32 v127, 1")
        e(f"buffer_atomic_add v127, off, {WS}, {T0} sc1")
        e("s_mov_b64 exec, -1")
        e(f"{l}:")

    def poll(self, cnt_base, sidx, vtmp="v8"):
        e = self.e
        l = e.label("L_poll")
        e(f"s_cmp_lg_u32 {sWV}, 0\ns_cbranch_scc1 {l}_done")
        e(f"s_lshl_b32 {T0}, {sidx}, 8\ns_add_u32 {T0}, {T0}, {cnt_base}")
        e(f"s_mov_b64 exec, 1\ns_mov_b32 {T2}, 0")
        e(f"{l}:")
        e(f"buffer_load_dword {vtmp}, off, {WS}, {T0} sc1")
        e(f"s_add_u32 {T2}, {T2}, 1\ns_cmp_ge_u32 {T2}, 0x80000\ns_cbranch_scc1 {l}_out")
        e("s_waitcnt vmcnt(0)")
        e(f"v_cmp_gt_u32 vcc, 16, {vtmp}\ns_cbranch_vccnz {l}")
        e(f"{l}_out:")
        e("s_waitcnt vmcnt(0)\ns_mov_b64 exec, -1")
        e(f"{l}_done:")
        e("s_barrier")

    def softmax2(self, P0, P1, O0, O1, vc, vt):
        e = self.e
        m = [vt, vt + 2]
        PP = [P0, P1]; OO = [O0, O1]
        for h in range(2): e(f"v_max3_f32 v{m[h]}, v{PP[h]}, v{PP[h]+1}, v{PP[h]+2}")
        for i in range(3, 15, 2):
            for h in range(2): e(f"v_max3_f32 v{m[h]}, v{m[h]}, v{PP[h]+i}, v{PP[h]+i+1}")
        for h in range(2): e(f"v_max_f32 v{m[h]}, v{m[h]}, v{PP[h]+15}")
        for h in range(2): e(f"v_mul_f32 v{m[h]}, v{m[h]}, v{vc+1}")
        for h in range(2):
            for i in range(0, 16, 2):
                e(f"v_pk_fma_f32 {vr(PP[h]+i,2)}, {vr(PP[h]+i,2)}, {vr(vc,2)}, {vr(m[h],2)} op_sel_hi:[1,0,0]")
        for h in range(2):
            for i in range(16): e(f"v_exp_f32 v{PP[h]+i}, v{PP[h]+i}")
        t = [vt + 4, vt + 12]
        for i in range(4):
            for h in range(2): e(f"v_pk_add_f32 {vr(t[h]+2*i,2)}, {vr(PP[h]+4*i,2)}, {vr(PP[h]+4*i+2,2)}")
        for i in range(2):
            for h in range(2): e(f"v_pk_add_f32 {vr(t[h]+4*i,2)}, {vr(t[h]+4*i,2)}, {vr(t[h]+4*i+2,2)}")
        for h in range(2): e(f"v_pk_add_f32 {vr(t[h],2)}, {vr(t[h],2)}, {vr(t[h]+4,2)}")
        for h in range(2): e(f"v_add_f32 v{t[h]}, v{t[h]}, v{t[h]+1}")
        for h in range(2): e(f"v_rcp_f32 v{t[h]}, v{t[h]}")
        for h in range(2):
            for i in range(0, 16, 2):
                e(f"v_pk_mul_f32 {vr(PP[h]+i,2)}, {vr(PP[h]+i,2)}, {vr(t[h],2)} op_sel_hi:[1,0]")
        for h in range(2):
            for i in range(8): e(f"v_cvt_pk_bf16_f32 v{OO[h]+i}, v{PP[h]+2*i}, v{PP[h]+2*i+1}")

    def prologue(self):
        e = self.e
        e("s_cmp_ge_u32 s2, 256\ns_cbranch_scc1 L_end")
        if self.diag: e("s_memrealtime s[78:79]")
        for i, (srd, off) in enumerate([(4, 0), (8, 8), (12, 16), (16, 24), (20, 40), (24, 56), (28, 72), (32, 88), (36, 80), (40, 48), (44, 64)]):
            e(f"s_load_dwordx2 s[{srd}:{srd+1}], s[0:1], {off}")
        for srd, n in [(4, 2097152), (8, 1572864), (12, 16384), (16, 524288), (20, 1835008), (24, 1835008), (28, 2097152), (32, WS_BYTES), (36, 256), (40, 3584), (44, 1024)]:
            e(f"s_mov_b32 s{srd+2}, {n}\ns_mov_b32 s{srd+3}, 0x20000")
        e("v_lshrrev_b32 v1, 6, v0\nv_and_b32 v0, 63, v0")
        e(f"v_readfirstlane_b32 {sWV}, v1")
        e(f"s_and_b32 {T0}, s2, 7\ns_lshr_b32 {T1}, s2, 3")
        e(f"s_lshr_b32 {T2}, {T0}, 1\ns_lshl_b32 {T2}, {T2}, 2\ns_lshr_b32 {T3}, {T1}, 3\ns_add_u32 {sRB}, {T2}, {T3}")
        e(f"s_and_b32 {T2}, {T0}, 1\ns_lshl_b32 {T2}, {T2}, 3\ns_and_b32 {T3}, {T1}, 7\ns_add_u32 {sJ}, {T2}, {T3}")
        e(f"s_lshl_b32 {T2}, {T0}, 1\ns_lshr_b32 {T3}, {T1}, 4\ns_add_u32 {sRG}, {T2}, {T3}")
        e(f"s_and_b32 {sM}, {T1}, 15\ns_lshr_b32 {sRH}, {sM}, 3\ns_and_b32 {sCB}, {sM}, 7")
        e(f"s_and_b32 {T2}, {sRB}, 3\ns_lshl_b32 {T2}, {T2}, 1\ns_add_u32 {T2}, {T2}, {sJ}\ns_and_b32 {sROT}, {T2}, 7")
        e(f"s_mov_b32 {sONE}, 0x3f803f80")
        e("v_lshlrev_b32 v1, 4, v0")
        e("v_lshrrev_b32 v12, 2, v0\nv_mul_u32_u24 v2, 3072, v12\nv_and_b32 v12, 3, v0\nv_lshl_add_u32 v2, v12, 4, v2")
        e("v_lshrrev_b32 v12, 4, v0\nv_and_b32 v13, 7, v0\nv_xor_b32 v12, v12, v13\nv_lshrrev_b32 v13, 3, v0\nv_lshlrev_b32 v13, 10, v13")
        e("v_lshl_add_u32 v3, v12, 4, v13\nv_xor_b32 v4, 64, v3")
        e("s_waitcnt lgkmcnt(0)")

    def w_soff(self, dst, p_expr_sgpr_or_int, col0):
        e = self.e
        e(f"s_add_u32 {dst}, {sROT}, {p_expr_sgpr_or_int}\ns_and_b32 {dst}, {dst}, 7\ns_mul_i32 {dst}, {dst}, {64*3072}")
        e(f"s_lshl_b32 {T3}, {sJ}, 6\ns_add_u32 {dst}, {dst}, {T3}")
        if col0: e(f"s_add_u32 {dst}, {dst}, {col0*2}")

    def dma_w_half(self, half):
        e = self.e
        e(f"s_add_u32 {T1}, {sWV}, {4*half}")
        self.w_soff(T0, T1, 512)
        e(f"s_lshl_b32 {T1}, {T1}, 12\ns_add_u32 {T1}, {T1}, {WK}")
        for tile in range(2):
            for s in range(4):
                e(f"s_add_u32 m0, {T1}, {tile*32768 + s*1024}\ns_add_u32 {T2}, {T0}, {tile*1024 + s*16*3072}")
                self.dma(f"W{half}", "v2", WQKV, T2)

    def dma_x(self, p, slot):
        e = self.e
        e(f"s_add_u32 {T0}, {sROT}, {p}\ns_and_b32 {T0}, {T0}, 7\ns_lshl_b32 {T0}, {T0}, 7\ns_add_u32 {T0}, {T0}, s56")
        e(f"s_add_u32 m0, s57, {slot*4096}")
        for q in range(4):
            if q: e(f"s_add_u32 {T0}, {T0}, {8192-1024}")
            self.dma(f"x{p}", "v4" if q & 1 else "v3", X, T0, off=q*1024)

    def colsum_part(self, items):
        e = self.e
        for g in range(0, len(items), 4):
            grp = items[g:g+4]
            for i, (va, off, acc) in enumerate(grp):
                e.ds("cs", f"ds_read_b64_tr_b16 {vr(64+4*i,2)}, {va} offset:{off}")
                e.ds("cs", f"ds_read_b64_tr_b16 {vr(66+4*i,2)}, {va} offset:{off+256}")
            e.wait(ds="cs")
            for r in range(4):
                for i, (va, off, acc) in enumerate(grp):
                    e(f"v_dot2c_f32_bf16 {acc}, {sONE}, v{64+4*i+r}")

    def wfrag(self, tile, sp, buf):
        e = self.e
        off = tile * 32768 + sp * 1024
        e.ds(f"wf{tile}_{sp}", f"ds_read_b64_tr_b16 {vr(buf,2)}, v5 offset:{off}")
        e.ds(f"wf{tile}_{sp}", f"ds_read_b64_tr_b16 {vr(buf+2,2)}, v5 offset:{off+256}")

    def xstats(self, p):
        e = self.e
        for i in range(16):
            r = 128 + 16 * p + i
            e(f"v_dot2c_f32_bf16 v{96+(i&1)}, {sONE}, v{r}")
            e(f"v_dot2c_f32_bf16 v{98+(i&1)}, v{r}, v{r}")

    def xread(self, p, slot):
        e = self.e
        for s in range(4):
            e.ds(f"xf{p}", f"ds_read_b128 {vr(128+16*p+4*s)}, v{6+s} offset:{slot*4096}")

    def stageA(self):
        e = self.e
        e(f"s_or_b32 s58, s2, {sWV}")
        e("s_cmp_lg_u32 s58, 0\ns_cbranch_scc1 L_noinit")
        e(f"v_lshlrev_b32 v12, 8, v0\nv_mov_b32 v13, 0\nbuffer_store_dword v13, v12, {WS}, 0 offen sc1")
        e("L_noinit:")
        e(f"s_lshl_b32 s56, {sRB}, 2\ns_add_u32 s56, s56, {sWV}\ns_lshl_b32 s56, s56, 15")
        e(f"s_mul_i32 s57, {sWV}, {XW}")
        self.dma_w_half(0)
        e(f"s_lshl_b32 {T0}, {sJ}, 10")
        self.dma("wphi", "v1", WPHI, T0, m0=WPH)
        for p in range(4): self.dma_x(p, p)
        self.dma_w_half(1)
        self.dma_x(4, 4)
        if self.opt["codepf"]:
            e("s_getpc_b64 s[60:61]\nL_pc:")
            e(f"s_lshr_b32 {T0}, s2, 3\ns_lshl_b32 {T0}, {T0}, 2\ns_add_u32 {T0}, {T0}, {sWV}\ns_lshl_b32 {T0}, {T0}, 8")
            e(f"s_min_u32 {T0}, {T0}, L_end-L_pc-252")
            e(f"s_add_u32 s60, s60, {T0}\ns_addc_u32 s61, s61, 0")
            e("v_lshlrev_b32 v12, 2, v0\nv_mov_b32 v13, s61\nv_add_co_u32 v12, vcc, s60, v12\nv_addc_co_u32 v13, vcc, 0, v13, vcc")
            e.vm("pf", "global_load_dword v103, v[12:13], off")
        e("v_lshrrev_b32 v12, 5, v0\nv_lshlrev_b32 v12, 9, v12\nv_bfe_u32 v13, v0, 2, 2\nv_lshl_add_u32 v12, v13, 6, v12")
        e("v_bfe_u32 v13, v0, 4, 1\nv_lshl_add_u32 v12, v13, 5, v12\nv_and_b32 v13, 3, v0\nv_lshl_add_u32 v12, v13, 3, v12")
        e(f"v_add_u32 v5, {WK}, v12\nv_add_u32 v10, 12288, v12\nv_add_u32 v11, {12288+3*XW}, v12")
        e("v_and_b32 v12, 31, v0\nv_lshlrev_b32 v13, 7, v12\nv_add_u32 v13, s57, v13\nv_bfe_u32 v12, v0, 1, 3\nv_lshrrev_b32 v14, 5, v0\nv_xor_b32 v12, v12, v14")
        for s in range(4):
            e(f"v_xor_b32 v14, {2*s}, v12\nv_lshl_add_u32 v{6+s}, v14, 4, v13")
        for r in range(96, 103): e(f"v_mov_b32 v{r}, 0")
        e(f"v_lshlrev_b32 v12, 2, v0\nv_lshl_add_u32 v12, {sWV}, 8, v12\nv_add_u32 v12, {CS}, v12")
        e.ds("z", "ds_write_b32 v12, v96")
        e.wait(vm="W0")
        e("s_cmp_lg_u32 s58, 0\ns_cbranch_scc1 L_noinit2")
        e(f"v_mov_b32 v13, 1\ns_mov_b64 exec, 1\nbuffer_store_dword v13, off, {DBG}, 0 sc1\ns_mov_b64 exec, -1")
        e("L_noinit2:")
        e(f"v_lshl_add_u32 v12, {sWV}, 12, v5")
        own = [("v12", t*32768 + s*1024, f"v{100+t}") for t in range(2) for s in range(4)]
        self.colsum_part(own)
        e.wait(vm="wphi")
        e("v_lshrrev_b32 v13, 5, v0\nv_lshlrev_b32 v13, 7, v13\nv_bfe_u32 v14, v0, 2, 2\nv_lshl_add_u32 v13, v14, 5, v13")
        e("v_bfe_u32 v14, v0, 4, 1\nv_lshl_add_u32 v13, v14, 4, v13\nv_bfe_u32 v14, v0, 1, 1\nv_lshl_add_u32 v13, v14, 3, v13")
        e(f"v_add_u32 v13, {WPH}, v13")
        for h in range(2):
            e.ds("wp", f"ds_read_b64_tr_b16 {vr(104+4*h,2)}, v13 offset:{h*512}")
            e.ds("wp", f"ds_read_b64_tr_b16 {vr(106+4*h,2)}, v13 offset:{h*512+256}")
        e("v_bfe_u32 v14, v0, 2, 1\nv_mul_u32_u24 v14, 0x8000, v14\nv_lshl_or_b32 v14, v14, 16, v14")
        e.wait(ds=0)
        for r in range(104, 112): e(f"v_xor_b32 v{r}, v{r}, v14")
        e("s_barrier")
        self.stamp()
        accK, accV = 16, 32
        def mf(acc, a, b, first):
            e(f"v_mfma_f32_32x32x16_bf16 {vr(acc,16)}, {vr(a)}, {vr(b)}, {'0' if first else vr(acc,16)}")
        for s in range(4):
            self.wfrag(0, s, 64 + 8*s); self.wfrag(1, s, 68 + 8*s)
        e.wait(vm="x0"); self.xread(0, 0)
        for p in range(8):
            e.wait(ds=f"xf{p}")
            if p < 3: self.dma_x(5 + p, p)
            if p == 3 or p == 4:
                e(f"s_lshl_b32 {T1}, {sWV}, 1\ns_add_u32 {T1}, {T1}, {p-3}")
                self.w_soff(T0, T1, 0)
                for s in range(4):
                    e(f"s_add_u32 m0, s57, {p*4096 + s*1024}\ns_add_u32 {T2}, {T0}, {s*16*3072}")
                    self.dma("Wq", "v2", WQKV, T2)
            if p == 4: self.side_loads()
            if p == 7:
                self.xstats(7)
                for t in range(2):
                    for i in range(4):
                        e.ds("cst", f"ds_read_b128 {vr((48,112)[t]+4*i)}, v12 offset:{t*128 + i*32}")
                for s in range(4): mf(accK, 64 + 8*s, 128 + 16*p + 4*s, False)
                self.ln_finalize()
                e.wait(ds="cst")
                for s in range(4):
                    mf(accV, 68 + 8*s, 128 + 16*p + 4*s, False)
                break
            for s in range(4):
                mf(accK, 64 + 8*s, 128 + 16*p + 4*s, p == 0 and s == 0)
                mf(accV, 68 + 8*s, 128 + 16*p + 4*s, p == 0 and s == 0)
                if p != 3:
                    self.wfrag(0, 4*(p+1) + s, 64 + 8*s); self.wfrag(1, 4*(p+1) + s, 68 + 8*s)
            if p == 3:
                self.xstats(3)
                e.wait(vm="W1")
                e(f"v_lshl_add_u32 v12, {sWV}, 12, v5")
                own = [("v12", t*32768 + 16384 + s*1024, f"v{100+t}") for t in range(2) for s in range(4)]
                self.colsum_part(own)
                e(f"v_and_b32 v12, 31, v0\nv_lshlrev_b32 v12, 2, v12\nv_add_u32 v12, {CS}, v12")
                e.ds("csa", "ds_add_f32 v12, v100")
                e.ds("csa", "ds_add_f32 v12, v101 offset:128")
                e.wait(ds=0)
                e("s_barrier")
                self.stamp()
                for s in range(4):
                    self.wfrag(0, 16 + s, 64 + 8*s); self.wfrag(1, 16 + s, 68 + 8*s)
                e(f"v_lshrrev_b32 v12, 5, v0\nv_lshlrev_b32 v12, 4, v12\nv_add_u32 v12, {CS}, v12")
                e.wait(vm="x4"); self.xread(4, 4)
            else:
                e.wait(vm=f"x{p+1}"); self.xread(p + 1, (p + 1) % 5)
                self.xstats(p)
        self.stamp()
        for r in range(16): e(f"v_fmac_f32 v{accK+r}, v96, v{48+r}")
        for i in range(8): e(f"v_cvt_pk_bf16_f32 v{48+i}, v{accK+2*i}, v{accK+2*i+1}")
        mf(64, 104, 48, True); mf(80, 108, 52, True)
        for r in range(16): e(f"v_fmac_f32 v{accV+r}, v96, v{112+r}")
        for i in range(8): e(f"v_pk_mul_f32 {vr(accV+2*i,2)}, {vr(accV+2*i,2)}, {vr(98,2)} op_sel_hi:[1,0]")
        for i in range(8): e(f"v_cvt_pk_bf16_f32 v{56+i}, v{accV+2*i}, v{accV+2*i+1}")
        e("v_and_b32 v13, 31, v0\nv_lshlrev_b32 v13, 5, v13\nv_add_u32 v13, s57, v13\nv_lshrrev_b32 v15, 5, v0\nv_lshl_add_u32 v14, v15, 10, v13\nv_lshl_add_u32 v13, v15, 4, v13")
        e.ds("img", f"ds_write_b128 v13, {vr(56)} offset:4096")
        e.ds("img", f"ds_write_b128 v13, {vr(60)} offset:5120")
        self.softmax2(64, 80, 32, 40, 100, 16)
        for h in range(2):
            e.ds("img", f"ds_write_b128 v14, {vr(32+8*h)} offset:{h*2048}")
            e.ds("img", f"ds_write_b128 v14, {vr(36+8*h)} offset:{h*2048+16}")
        self.relayout()
        e.wait(vm="Wq")
        e(f"v_add_u32 v15, s57, v10")
        self.colsum_part([("v15", s*1024, "v102") for s in range(8)])
        e(f"v_and_b32 v15, 31, v0\nv_lshlrev_b32 v15, 2, v15\nv_add_u32 v15, {CS}, v15")
        e.ds("csa", "ds_add_f32 v15, v102 offset:256")
        e("v_lshrrev_b32 v13, 2, v0\nv_lshlrev_b32 v13, 5, v13\nv_and_b32 v15, 3, v0\nv_lshl_add_u32 v13, v15, 3, v13")
        e(f"s_lshr_b32 {T0}, {sWV}, 1\ns_lshl_b32 {T0}, {T0}, 10\ns_add_u32 {T0}, {T0}, 4096\nv_add_u32 v15, {T0}, v13")
        e(f"v_lshl_add_u32 v13, {sWV}, 10, v13")
        for r in range(56, 60): e(f"v_mov_b32 v{r}, {sONE}")
        e.wait(ds=0)
        e("s_barrier")
        self.stamp()
        for w in range(4):
            e.ds(f"kva{w}", f"ds_read_b64_tr_b16 {vr(64+8*w,2)}, v13 offset:{w*XW}")
            e.ds(f"kva{w}", f"ds_read_b64_tr_b16 {vr(66+8*w,2)}, v13 offset:{w*XW+512}")
            e.ds(f"kva{w}", f"ds_read_b64_tr_b16 {vr(68+8*w,2)}, v15 offset:{w*XW}")
            e.ds(f"kva{w}", f"ds_read_b64_tr_b16 {vr(70+8*w,2)}, v15 offset:{w*XW+512}")
        e.vm("init", f"buffer_load_dword v14, off, {DBG}, 0 sc1")
        for w in range(4):
            e.wait(ds=f"kva{w}")
            e(f"v_mfma_f32_16x16x32_bf16 {vr(48)}, {vr(64+8*w)}, {vr(68+8*w)}, {'0' if w == 0 else vr(48)}")
            e(f"v_mfma_f32_16x16x32_bf16 {vr(52)}, {vr(64+8*w)}, {vr(56)}, {'0' if w == 0 else vr(52)}")
        def qfrag(sp, buf):
            w, s = sp >> 3, sp & 7
            va, off = ("v11", s*1024) if w == 3 else ("v10", w*XW + s*1024)
            e.ds(f"qf{sp}", f"ds_read_b64_tr_b16 {vr(buf,2)}, {va} offset:{off}")
            e.ds(f"qf{sp}", f"ds_read_b64_tr_b16 {vr(buf+2,2)}, {va} offset:{off+256}")
        e(f"s_lshl_b32 {T0}, {sJ}, 4\ns_add_u32 {T0}, {T0}, {sRB}\ns_lshl_b32 {T0}, {T0}, 2\ns_add_u32 {T0}, {T0}, {sWV}\ns_lshl_b32 {T0}, {T0}, 10\ns_add_u32 {T0}, {T0}, {KVP}")
        e(f"s_lshl_b32 {T1}, {sJ}, 2\ns_add_u32 {T1}, {T1}, {sWV}\ns_lshl_b32 {T1}, {T1}, 4\ns_add_u32 {T1}, {T1}, {sRB}\ns_lshl_b32 {T1}, {T1}, 6\ns_add_u32 {T1}, {T1}, {ZP}")
        e("v_and_b32 v13, 0x30, v0")
        e.vm("st", f"buffer_store_dwordx4 {vr(48)}, v1, {WS}, {T0} offen sc1")
        e("s_mov_b32 exec_lo, 0x00010001\ns_mov_b32 exec_hi, 0x00010001")
        e.vm("st", f"buffer_store_dwordx4 {vr(52)}, v13, {WS}, {T1} offen sc1")
        e("s_mov_b64 exec, -1")
        for sp in range(4): qfrag(sp, 64 + 4*sp)
        self.stamp()
        for sp in range(32):
            if sp + 4 < 32: qfrag(sp + 4, 64 + 4*((sp + 4) % 8))
            e.wait(ds=f"qf{sp}")
            mf(16, 64 + 4*(sp % 8), 128 + 4*sp, sp == 0)
            if sp == 19:
                e.wait(vm="st")
                self.arrive(CNT, sJ, check_init=True)
                self.pref_wo()
            if sp == 27:
                for i in range(4): e.ds("cst", f"ds_read_b128 {vr(48+4*i)}, v12 offset:{256 + i*32}")
        e.wait(ds="cst")
        for r in range(16): e(f"v_fmac_f32 v{16+r}, v96, v{48+r}")
        for i in range(8): e(f"v_cvt_pk_bf16_f32 v{48+i}, v{16+2*i}, v{16+2*i+1}")
        mf(64, 104, 48, True); mf(80, 108, 52, True)
        self.w1_voffs()
        self.softmax2(64, 80, 32, 40, 100, 16)
        self.stamp()

    def ln_finalize(self):
        e = self.e
        e("v_add_f32 v96, v96, v97\nv_add_f32 v98, v98, v99\nv_mov_b32 v97, v96\nv_mov_b32 v99, v98")
        e("v_permlane32_swap_b32 v96, v97\nv_permlane32_swap_b32 v98, v99")
        e("v_add_f32 v96, v96, v97\nv_add_f32 v98, v98, v99")
        e(f"v_mul_f32 v96, {f32(-1/512)}, v96\nv_mul_f32 v98, {f32(1/512)}, v98")
        e(f"v_fma_f32 v98, -v96, v96, v98\nv_max_f32 v98, 0, v98\nv_add_f32 v98, {f32(1e-5)}, v98\nv_rsq_f32 v98, v98")
        e(f"v_mul_f32 v100, {f32(LOG2E)}, v98\nv_mul_f32 v101, {f32(-LOG2E)}, v98")

    def rl_ids(self):
        e = self.e
        e(f"s_lshl_b32 s59, s2, 1\ns_add_u32 s59, s59, {sWV}")
        e(f"s_cmp_ge_u32 {sWV}, 2\ns_cselect_b32 s59, 448, s59\ns_cmp_ge_u32 s59, 448")

    def side_loads(self):
        e = self.e
        self.rl_ids()
        e("s_cbranch_scc1 L_norl1")
        e(f"s_lshr_b32 {T0}, s59, 3\ns_mul_i32 {T1}, {T0}, 37\ns_lshr_b32 {T1}, {T1}, 8")
        e(f"s_mul_i32 {T2}, {T1}, 7\ns_sub_u32 {T0}, {T0}, {T2}")
        e(f"s_mul_i32 {T1}, {T1}, 224\ns_lshl_b32 {T2}, {T0}, 5\ns_add_u32 {T1}, {T1}, {T2}")
        e(f"s_cmp_ge_u32 {T0}, 4\ns_cselect_b32 {T2}, 16, 0\ns_sub_u32 {T1}, {T1}, {T2}")
        e(f"s_cmp_eq_u32 {T0}, 3\ns_cselect_b32 {T2}, 112, 16\ns_add_u32 {T2}, {T2}, {T1}")
        e(f"s_and_b32 {T0}, s59, 7\ns_lshl_b32 {T0}, {T0}, 7")
        e(f"s_lshl_b32 {T1}, {T1}, 10\ns_add_u32 {T1}, {T1}, {T0}\ns_lshl_b32 {T2}, {T2}, 10\ns_add_u32 {T2}, {T2}, {T0}")
        e("v_lshrrev_b32 v14, 4, v0\nv_lshlrev_b32 v14, 1, v14\nv_and_b32 v15, 7, v0\nv_xor_b32 v14, v14, v15\nv_lshrrev_b32 v15, 3, v0\nv_lshlrev_b32 v15, 10, v15\nv_lshl_add_u32 v15, v14, 4, v15")
        e(f"s_lshl_b32 {T0}, {sWV}, 12\ns_add_u32 m0, {T0}, {RL}")
        e(f"buffer_load_dwordx4 v15, {W2s}, {T1} offen lds")
        e(f"s_add_u32 {T1}, {T1}, {8192-1024}\nbuffer_load_dwordx4 v15, {W2s}, {T1} offen offset:1024 lds")
        e(f"s_add_u32 m0, m0, 2048\ns_nop 0\nbuffer_load_dwordx4 v15, {W2s}, {T2} offen lds")
        e(f"s_add_u32 {T2}, {T2}, {8192-1024}\nbuffer_load_dwordx4 v15, {W2s}, {T2} offen offset:1024 lds")
        e("L_norl1:")
        if self.opt["touch"]:
            e(f"s_lshl_b32 {T0}, s2, 2\ns_add_u32 {T0}, {T0}, {sWV}\ns_mul_i32 {T1}, {T0}, 1792\ns_lshl_b32 {T0}, {T0}, 9")
            e("v_mul_u32_u24 v14, 28, v0\nv_lshlrev_b32 v15, 3, v0")
            e.vm("touch", f"buffer_load_dword v103, v14, {W1s}, {T1} offen")
            e.vm("touch", f"buffer_load_dword v103, v15, {WOs}, {T0} offen")
        e.vm("rl", f"buffer_load_dword v103, off, {B2s}, 0")

    def relayout(self):
        e = self.e
        e.wait(vm="rl")
        self.rl_ids()
        e("s_cbranch_scc1 L_norl2")
        e("v_lshrrev_b32 v15, 2, v0\nv_lshlrev_b32 v13, 7, v15\nv_and_b32 v15, 6, v15")
        e("v_bfe_u32 v103, v0, 1, 1\nv_lshl_add_u32 v13, v103, 4, v13\nv_and_b32 v103, 1, v0\nv_lshl_add_u32 v13, v103, 3, v13")
        e(f"s_lshl_b32 {T0}, {sWV}, 12\ns_add_u32 {T0}, {T0}, {RL}\nv_add_u32 v13, {T0}, v13")
        for nt in range(4):
            e(f"v_xor_b32 v103, {2*nt}, v15\nv_lshl_add_u32 v103, v103, 4, v13")
            e(f"ds_read_b64_tr_b16 {vr(112+4*nt,2)}, v103")
            e(f"ds_read_b64_tr_b16 {vr(114+4*nt,2)}, v103 offset:2048")
        e(f"s_and_b32 {T0}, s59, 7\ns_mul_i32 {T0}, {T0}, 56\ns_lshr_b32 {T1}, s59, 3\ns_add_u32 {T0}, {T0}, {T1}\ns_lshl_b32 {T0}, {T0}, 12\ns_add_u32 {T0}, {T0}, {W2F}")
        e("s_waitcnt lgkmcnt(0)")
        for nt in range(4):
            e(f"buffer_store_dwordx4 {vr(112+4*nt)}, v1, {WS}, {T0} offen offset:{nt*1024} sc1")
        e("L_norl2:")

    def pref_wo(self):
        e = self.e
        e(f"s_and_b32 {T0}, {sRG}, 1\ns_lshl_b32 {T0}, {T0}, 3\ns_lshl_b32 {T1}, {sCB}, 1\ns_add_u32 {T0}, {T0}, {T1}\ns_add_u32 {T0}, {T0}, {sRH}\ns_and_b32 s60, {T0}, 15")
        e("v_lshrrev_b32 v7, 4, v0\nv_lshlrev_b32 v7, 1, v7\nv_and_b32 v6, 7, v0\nv_xor_b32 v7, v7, v6\nv_lshrrev_b32 v6, 3, v0\nv_lshlrev_b32 v6, 10, v6\nv_lshl_add_u32 v6, v7, 4, v6")
        e(f"s_lshl_b32 {T3}, {sCB}, 7")
        for i in range(4):
            e(f"s_lshl_b32 {T1}, {sWV}, 2\ns_add_u32 {T1}, {T1}, {i}\ns_add_u32 {T0}, {T1}, s60\ns_and_b32 {T0}, {T0}, 15\ns_lshl_b32 {T0}, {T0}, 15\ns_add_u32 {T0}, {T0}, {T3}")
            e(f"s_lshl_b32 {T1}, {T1}, 12\ns_add_u32 m0, {T1}, {WO}")
            for q in range(4):
                if q: e(f"s_add_u32 {T0}, {T0}, {8192-1024}")
                self.dma("wo", "v6", WOs, T0, off=q*1024)

    def w1_voffs(self):
        e = self.e
        for q in range(7):
            e(f"v_add_u32 v7, {64*q}, v0\nv_mul_u32_u24 v8, 4682, v7\nv_lshrrev_b32 v8, 16, v8\nv_mul_u32_u24 v{9+q}, {3584-224}, v8\nv_lshl_add_u32 v{9+q}, v7, 4, v{9+q}")
        e(f"s_and_b32 {T0}, {sRG}, 1\ns_lshl_b32 {T0}, {T0}, 3\ns_add_u32 {T0}, {T0}, {sM}\ns_and_b32 s61, {T0}, 15")

    def pref_w1(self, i):
        e = self.e
        e(f"s_add_u32 {T1}, {sWV}, {4*i}\ns_add_u32 {T0}, {T1}, s61\ns_and_b32 {T0}, {T0}, 15\ns_mul_i32 {T0}, {T0}, {32*3584}\ns_mul_i32 {T2}, {sM}, 224\ns_add_u32 {T0}, {T0}, {T2}")
        base = W1M + 4*i*7168 if i < 3 else W1L
        e(f"s_mul_i32 {T1}, {sWV}, 7168\ns_add_u32 {T1}, {T1}, {base}")
        for q in range(7):
            e(f"s_add_u32 m0, {T1}, {q*1024}")
            self.dma(f"w1_{i}", f"v{9+q}", W1s, T0)

    def rotE(self):
        e = self.e
        e(f"s_mul_i32 {T0}, {sCB}, 7\ns_lshr_b32 {T0}, {T0}, 2\ns_and_b32 {T1}, {sRG}, 1\ns_lshl_b32 {T1}, {T1}, 1\ns_add_u32 {T1}, {T1}, {sRH}\ns_mul_i32 {T1}, {T1}, 3\ns_add_u32 {T0}, {T0}, {T1}")
        e(f"s_cmp_ge_u32 {T0}, 14\ns_cselect_b32 {T1}, 14, 0\ns_sub_u32 {T0}, {T0}, {T1}")
        for sp in range(14):
            e(f"s_lshl_b32 {self.sE(sp)}, {T0}, 10")
            if sp < 13: e(f"s_add_u32 {T0}, {T0}, 1\ns_cmp_ge_u32 {T0}, 14\ns_cselect_b32 {T0}, 0, {T0}")
    def sE(self, sp): return f"s{62+sp}" if sp < 8 else f"s{96+sp-8}"

    def pref_w2(self, sp0, sp1):
        e = self.e
        e(f"s_lshl_b32 {T0}, {sCB}, 2\ns_add_u32 {T0}, {T0}, {sWV}\ns_mul_i32 {T0}, {T0}, {14*4096}\ns_add_u32 {T0}, {T0}, {W2F}\nv_add_u32 v7, {T0}, v1")
        for sp in range(sp0, sp1):
            e(f"s_lshl_b32 {T0}, {self.sE(sp)}, 2")
            for nt in range(4):
                e.vm("w2", f"buffer_load_dwordx4 {ar(16*sp+4*nt)}, v7, {WS}, {T0} offen offset:{nt*1024} sc1")

    def stageB(self):
        e = self.e
        self.poll(CNT, sJ)
        self.stamp()
        e(f"s_lshl_b32 {T0}, {sJ}, 6\ns_add_u32 {T0}, {T0}, {sWV}\ns_lshl_b32 {T0}, {T0}, 10\ns_add_u32 {T0}, {T0}, {KVP}")
        e(f"s_lshl_b32 {T1}, {sRB}, 12")
        for i in range(16):
            e(f"s_add_u32 {T2}, {T0}, {T1}")
            e.vm(f"kv{i}", f"buffer_load_dwordx4 {vr(128+4*i)}, v1, {WS}, {T2} offen sc1")
            if i < 15: e(f"s_add_u32 {T1}, {T1}, 4096\ns_and_b32 {T1}, {T1}, 0xffff")
        e(f"s_lshl_b32 {T0}, {sJ}, 2\ns_add_u32 {T0}, {T0}, {sWV}\ns_lshl_b32 {T0}, {T0}, 10\ns_add_u32 {T0}, {T0}, {ZP}")
        e("v_lshlrev_b32 v8, 2, v0")
        for i in range(4):
            e.vm("z", f"buffer_load_dword v{192+i}, v8, {WS}, {T0} offen offset:{i*256} sc1")
        self.pref_w1(0)
        e("v_and_b32 v2, 3, v0\nv_bfe_u32 v3, v0, 2, 1\nv_lshl_add_u32 v2, v3, 3, v2\nv_bfe_u32 v3, v0, 3, 1\nv_lshl_add_u32 v2, v3, 2, v2\nv_lshlrev_b32 v2, 6, v2")
        e("v_lshrrev_b32 v3, 4, v0\nv_lshl_add_u32 v2, v3, 3, v2")
        e(f"s_lshr_b32 {T0}, {sWV}, 1\ns_mul_i32 {T0}, {T0}, 1088\ns_and_b32 {T1}, {sWV}, 1\ns_lshl_b32 {T1}, {T1}, 5\ns_add_u32 {T0}, {T0}, {T1}\ns_add_u32 {T0}, {T0}, {BIMG}")
        e(f"v_add_u32 v2, {T0}, v2\nv_and_b32 v3, 15, v0\nv_lshlrev_b32 v3, 1, v3\nv_add_u32 v3, {T0}, v3")
        e(f"v_and_b32 v4, 31, v0\nv_min_u32 v4, 16, v4\nv_lshlrev_b32 v4, 6, v4\nv_lshrrev_b32 v5, 5, v0\nv_lshl_add_u32 v4, v5, 5, v4\nv_add_u32 v4, {BIMG}, v4")
        e("v_bfe_u32 v5, v0, 4, 1\nv_lshlrev_b32 v5, 14, v5\nv_and_b32 v8, 15, v0\nv_lshl_add_u32 v5, v8, 4, v5\nv_lshrrev_b32 v8, 5, v0\nv_lshl_add_u32 v5, v8, 8, v5")
        for i in range(1, 16):
            e.wait(vm=f"kv{i}")
            a = 128 + 4*(i & 1) if i > 1 else None
            if i == 1: continue
            for k in range(2): e(f"v_pk_add_f32 {vr(a+2*k,2)}, {vr(a+2*k,2)}, {vr(128+4*i+2*k,2)}")
        for k in range(2): e(f"v_pk_add_f32 {vr(128+2*k,2)}, {vr(128+2*k,2)}, {vr(132+2*k,2)}")
        e("v_cvt_pk_bf16_f32 v128, v128, v129\nv_cvt_pk_bf16_f32 v129, v130, v131")
        e.ds("bi", "ds_write_b64 v2, v[128:129]")
        e.wait(vm="z")
        e("v_add_f32 v192, v192, v193\nv_add_f32 v194, v194, v195\nv_add_f32 v192, v192, v194\nv_mov_b32 v193, v192")
        e("v_permlane32_swap_b32 v192, v193\nv_add_f32 v192, v192, v193\nv_mov_b32 v193, v192")
        e("v_permlane16_swap_b32 v192, v193\nv_add_f32 v192, v192, v193\nv_cvt_pk_bf16_f32 v192, v192, v192")
        e.ds("bi", "ds_write_b16 v3, v192 offset:1024")
        e.wait(ds=0)
        e("s_barrier")
        for h in range(2):
            for s in range(2):
                e.ds(f"ba{h}", f"ds_read_b128 {vr(64+8*h+4*s)}, v4 offset:{h*1088 + s*16}")
        e(f"s_lshl_b32 {T0}, {sRB}, 2\ns_add_u32 {T0}, {T0}, {sWV}\ns_lshl_b32 {T0}, {T0}, 5\ns_add_u32 {T0}, {T0}, {sJ}\ns_lshl_b32 {T0}, {T0}, 10\ns_add_u32 {T0}, {T0}, {OB}")
        for h in range(2):
            e.wait(ds=f"ba{h}")
            for s in range(2):
                e(f"v_mfma_f32_32x32x16_bf16 {vr(80+16*h,16)}, {vr(64+8*h+4*s)}, {vr(32+8*h+4*s)}, {'0' if s == 0 else vr(80+16*h,16)}")
        for h in range(2):
            d = 80 + 16*h
            e(f"v_add_f32 v{d+8}, {f32(1e-6)}, v{d+8}\nv_rcp_f32 v{d+8}, v{d+8}")
            for i in range(4): e(f"v_pk_mul_f32 {vr(d+2*i,2)}, {vr(d+2*i,2)}, {vr(d+8,2)} op_sel_hi:[1,0]")
            for i in range(4): e(f"v_cvt_pk_bf16_f32 v{112+4*h+i}, v{d+2*i}, v{d+2*i+1}")
            e.vm("st", f"buffer_store_dwordx4 {vr(112+4*h)}, v5, {WS}, {T0} offen offset:{h*512} sc1")
        self.stamp()
        e("v_lshrrev_b32 v7, 5, v0\nv_lshlrev_b32 v7, 4, v7\nv_bfe_u32 v8, v0, 2, 3\nv_add_u32 v7, v7, v8\nv_lshlrev_b32 v7, 7, v7\nv_and_b32 v8, 6, v8")
        e(f"v_bfe_u32 v6, v0, 1, 1\nv_lshl_add_u32 v7, v6, 4, v7\nv_and_b32 v6, 1, v0\nv_lshl_add_u32 v7, v6, 3, v7\nv_add_u32 v7, {WO}, v7")
        for nt in range(4): e(f"v_xor_b32 v6, {2*nt}, v8\nv_lshl_add_u32 v{2+nt}, v6, 4, v7")
        self.rotE()
        e.wait(vm="st")
        self.arrive(CNT + 4096, sRB)
        self.pref_w1(1); self.pref_w1(2)
        e(f"s_lshl_b32 s56, {sRG}, 1\ns_add_u32 s56, s56, {sRH}\ns_lshl_b32 s56, s56, 2\ns_add_u32 s56, s56, {sWV}")
        e(f"s_lshl_b32 {T0}, s56, 14\ns_lshl_b32 {T1}, {sCB}, 7\ns_add_u32 s57, {T0}, {T1}")
        e("v_lshrrev_b32 v7, 4, v0\nv_lshlrev_b32 v7, 3, v7\nv_and_b32 v6, 15, v0\nv_lshl_add_u32 v6, v6, 10, v7")
        for nt in range(4):
            e.vm("res", f"buffer_load_dwordx2 {vr(48+2*nt,2)}, v6, {X}, s57 offen offset:{nt*32}")
        for nt in range(4):
            e.vm("res", f"buffer_load_dwordx2 {vr(56+2*nt,2)}, v7, {B2s}, {T1} offen offset:{nt*32}")
        e(f"s_mul_i32 {T0}, {sM}, 224\nv_lshlrev_b32 v7, 2, v0")
        e.vm("res", f"buffer_load_dword v32, v7, {B1s}, {T0} offen")

    def stageC(self):
        e = self.e
        def wof(s, nt, buf):
            e.ds(f"wo{s}_{nt}", f"ds_read_b64_tr_b16 {vr(buf,2)}, v{2+nt} offset:{s*4096}")
            e.ds(f"wo{s}_{nt}", f"ds_read_b64_tr_b16 {vr(buf+2,2)}, v{2+nt} offset:{s*4096+1024}")
        e.wait(vm="wo")
        self.poll(CNT + 4096, sRG)
        self.stamp()
        e(f"s_lshl_b32 {T0}, s56, 14\ns_add_u32 {T0}, {T0}, {OB}\ns_lshl_b32 {T1}, s60, 10")
        for s in range(16):
            e(f"s_add_u32 {T2}, {T0}, {T1}")
            e.vm(f"o{s}", f"buffer_load_dwordx4 {vr(128+4*s)}, v1, {WS}, {T2} offen sc1")
            if s < 15: e(f"s_add_u32 {T1}, {T1}, 1024\ns_and_b32 {T1}, {T1}, 0x3fff")
        self.pref_w2(0, 4)
        seq = [(s, nt) for s in range(16) for nt in range(4)]
        for k in range(6): wof(*seq[k], 64 + 4*(k % 8))
        e.wait(vm="res")
        e(f"v_lshlrev_b32 v34, 16, v32\nv_and_b32 v35, 0xffff0000, v32\nv_lshlrev_b32 v7, 3, v0\nv_add_u32 v7, {B1T}, v7")
        e.ds("b1", "ds_write_b64 v7, v[34:35]")
        for k, (s, nt) in enumerate(seq):
            if k + 6 < 64: wof(*seq[k+6], 64 + 4*((k + 6) % 8))
            e.wait(vm=f"o{s}" if nt == 0 else None, ds=f"wo{s}_{nt}")
            e(f"v_mfma_f32_16x16x32_bf16 {vr(16+4*nt)}, {vr(64+4*(k%8))}, {vr(128+4*s)}, {'0' if s == 0 else vr(16+4*nt)}")
        for i in range(8):
            e(f"v_lshlrev_b32 v{64+2*i}, 16, v{48+i}\nv_and_b32 v{65+2*i}, 0xffff0000, v{48+i}")
        for i in range(8): e(f"v_pk_add_f32 {vr(16+2*i,2)}, {vr(16+2*i,2)}, {vr(64+2*i,2)}")
        for i in range(8): e(f"v_cvt_pk_bf16_f32 v{40+i}, v{16+2*i}, v{17+2*i}")
        e(f"s_lshl_b32 {T0}, s56, 4\ns_lshl_b32 {T1}, {sCB}, 1\ns_add_u32 {T0}, {T0}, {T1}\ns_lshl_b32 {T0}, {T0}, 10\ns_add_u32 {T0}, {T0}, {HB}")
        e.vm("st", f"buffer_store_dwordx4 {vr(40)}, v1, {WS}, {T0} offen sc1")
        e.vm("st", f"buffer_store_dwordx4 {vr(44)}, v1, {WS}, {T0} offen offset:1024 sc1")
        e("v_mov_b32 v32, 0\nv_mov_b32 v33, 0")
        for i in range(8): e(f"v_dot2c_f32_bf16 v32, {sONE}, v{40+i}\nv_dot2c_f32_bf16 v33, v{40+i}, v{40+i}")
        e(f"s_lshl_b32 {T0}, s56, 3\ns_add_u32 {T0}, {T0}, {sCB}\ns_lshl_b32 {T0}, {T0}, 7\ns_add_u32 {T0}, {T0}, {STATS}\nv_lshlrev_b32 v7, 3, v0")
        e("v_mov_b32 v34, v32\nv_mov_b32 v35, v33\nv_permlane32_swap_b32 v32, v34\nv_permlane32_swap_b32 v33, v35\nv_pk_add_f32 v[32:33], v[32:33], v[34:35]")
        e("v_mov_b32 v34, v32\nv_mov_b32 v35, v33\nv_permlane16_swap_b32 v32, v34\nv_permlane16_swap_b32 v33, v35\nv_pk_add_f32 v[32:33], v[32:33], v[34:35]")
        e("s_mov_b64 exec, 0xffff")
        e.vm("st", f"buffer_store_dwordx2 v[32:33], v7, {WS}, {T0} offen sc1")
        e("s_mov_b64 exec, -1")
        self.stamp()
        for i in range(8):
            e(f"v_lshlrev_b32 v{64+2*i}, 16, v{40+i}\nv_and_b32 v{65+2*i}, 0xffff0000, v{40+i}\nv_lshlrev_b32 v{80+2*i}, 16, v{56+i}\nv_and_b32 v{81+2*i}, 0xffff0000, v{56+i}")
        for i in range(8): e(f"v_pk_add_f32 {vr(64+2*i,2)}, {vr(64+2*i,2)}, {vr(80+2*i,2)}")
        for i in range(16): e(f"v_accvgpr_write_b32 a{224+i}, v{64+i}")
        e.wait(vm="st", ds=0)
        self.arrive(CNT + 8192, sRG)
        self.pref_w1(3)
        self.pref_w2(4, 6)
        e(f"v_lshrrev_b32 v2, 2, v0\nv_mul_u32_u24 v2, 224, v2\nv_and_b32 v3, 3, v0\nv_lshl_add_u32 v2, v3, 3, v2\nv_add_u32 v3, {9*7168}, v2\nv_add_u32 v4, {W1L}, v2")
        e(f"s_mul_i32 {T0}, {sWV}, 7168\nv_add_u32 v5, {T0}, v2")
        for nt in range(7): e(f"v_mov_b32 v{104+nt}, 0")
        for i in range(3): self.w1_colsum("v5", i*28672)

    def w1_colsum(self, va, off):
        e = self.e
        for nt in range(7):
            e.ds(f"c{nt}", f"ds_read_b64_tr_b16 {vr(72+4*nt,2)}, {va} offset:{off + nt*32}")
            e.ds(f"c{nt}", f"ds_read_b64_tr_b16 {vr(74+4*nt,2)}, {va} offset:{off + nt*32 + 3584}")
        e.wait(ds="c3")
        for r in range(4):
            for nt in range(4): e(f"v_dot2c_f32_bf16 v{104+nt}, {sONE}, v{72+4*nt+r}")
        e.wait(ds="c6")
        for r in range(4):
            for nt in range(4, 7): e(f"v_dot2c_f32_bf16 v{104+nt}, {sONE}, v{72+4*nt+r}")

    def stageD(self):
        e = self.e
        self.poll(CNT + 8192, sRG)
        self.stamp()
        e(f"s_lshl_b32 s58, {sRG}, 2\ns_add_u32 s58, s58, {sWV}\ns_lshl_b32 s58, s58, 1")
        e(f"s_lshl_b32 {T0}, s58, 10\ns_add_u32 {T0}, {T0}, {STATS}\nv_lshlrev_b32 v7, 3, v0")
        for tt in range(2):
            for k in range(2):
                e.vm("stat", f"buffer_load_dwordx2 {vr(112+4*tt+2*k,2)}, v7, {WS}, {T0} offen offset:{tt*1024 + k*512} sc1")
        e(f"s_lshl_b32 {T0}, s58, 14\ns_add_u32 {T0}, {T0}, {HB}\ns_lshl_b32 {T1}, s61, 10\nv_add_u32 v8, 16384, v1")
        for s in range(16):
            e(f"s_add_u32 {T2}, {T0}, {T1}")
            e.vm(f"h{s}", f"buffer_load_dwordx4 {vr(128+8*s)}, v1, {WS}, {T2} offen sc1")
            e.vm(f"h{s}", f"buffer_load_dwordx4 {vr(132+8*s)}, v8, {WS}, {T2} offen sc1")
            if s < 15: e(f"s_add_u32 {T1}, {T1}, 1024\ns_and_b32 {T1}, {T1}, 0x3fff")
        e.wait(vm="w1_3")
        e(f"s_mul_i32 {T0}, {sWV}, 7168\nv_add_u32 v5, {T0}, v4")
        self.w1_colsum("v5", 0)
        e(f"v_and_b32 v5, 15, v0\nv_lshlrev_b32 v5, 2, v5\nv_add_u32 v5, {CS1}, v5")
        for nt in range(7): e.ds("csa", f"ds_add_f32 v5, v{104+nt} offset:{nt*64}")
        e.wait(ds=0)
        e("s_barrier")
        def w1f(s, nt, buf):
            va, off = ("v2", s*7168) if s < 9 else ("v3", (s-9)*7168) if s < 12 else ("v4", (s-12)*7168)
            e.ds(f"w1{s}_{nt}", f"ds_read_b64_tr_b16 {vr(buf,2)}, {va} offset:{off + nt*32}")
            e.ds(f"w1{s}_{nt}", f"ds_read_b64_tr_b16 {vr(buf+2,2)}, {va} offset:{off + nt*32 + 3584}")
        seq = [(s, nt) for s in range(16) for nt in range(7)]
        LA = 5
        for k in range(LA): w1f(*seq[k], 72 + 4*(k % 8))
        e.wait(vm="stat")
        for tt in range(2):
            b = 112 + 4*tt
            e(f"v_pk_add_f32 {vr(b,2)}, {vr(b,2)}, {vr(b+2,2)}")
            for sw in ("32", "16"):
                e(f"v_mov_b32 v{b+2}, v{b}\nv_mov_b32 v{b+3}, v{b+1}\nv_permlane{sw}_swap_b32 v{b}, v{b+2}\nv_permlane{sw}_swap_b32 v{b+1}, v{b+3}\nv_pk_add_f32 {vr(b,2)}, {vr(b,2)}, {vr(b+2,2)}")
            e(f"v_mul_f32 v{b}, {f32(-1/512)}, v{b}\nv_mul_f32 v{b+1}, {f32(1/512)}, v{b+1}")
            e(f"v_fma_f32 v{b+1}, -v{b}, v{b}, v{b+1}\nv_max_f32 v{b+1}, 0, v{b+1}\nv_add_f32 v{b+1}, {f32(1e-5)}, v{b+1}\nv_rsq_f32 v{120+4*tt}, v{b+1}")
            e(f"v_mul_f32 v{122+4*tt}, v{b}, v{120+4*tt}")
        for k, (s, nt) in enumerate(seq):
            if k + LA < len(seq): w1f(*seq[k+LA], 72 + 4*((k + LA) % 8))
            e.wait(vm=f"h{s}" if nt == 0 else None, ds=f"w1{s}_{nt}")
            for tt in range(2):
                a = 16 + (tt*7 + nt)*4
                e(f"v_mfma_f32_16x16x32_bf16 {vr(a)}, {vr(72+4*(k%8))}, {vr(128+8*s+4*tt)}, {'0' if s == 0 else vr(a)}")
            if s == 8 and nt == 0: self.pref_w2(6, 14)
        self.stamp()
        e(f"v_lshrrev_b32 v5, 4, v0\nv_lshlrev_b32 v5, 4, v5\nv_add_u32 v5, {CS1}, v5")
        for nt in range(7):
            e.ds(f"t{nt}", f"ds_read_b128 {vr(128+8*nt)}, v5 offset:{nt*64}")
            e.ds(f"t{nt}", f"ds_read_b128 {vr(132+8*nt)}, v5 offset:{512 + nt*64}")
        k1 = -2.0 * math.sqrt(2.0 / math.pi) * LOG2E
        e(f"s_mov_b32 {T2}, {f32(k1*0.044715)}\ns_mov_b32 {T3}, {f32(k1)}\nv_mov_b32 v110, {T3}")
        e(f"s_lshr_b32 {T0}, {sM}, 1\ns_mul_i32 {T0}, {T0}, 7\ns_mul_i32 {T1}, s58, 56\ns_add_u32 {T0}, {T0}, {T1}\ns_lshl_b32 {T0}, {T0}, 10\ns_add_u32 {T0}, {T0}, {ACT}")
        e(f"s_and_b32 {T1}, {sM}, 1\ns_lshl_b32 s59, {T1}, 12\ns_add_u32 s59, s59, {T0}\ns_lshl_b32 {T1}, {T1}, 3\ns_add_u32 {T1}, {T1}, {T0}\ns_add_u32 {T1}, {T1}, 3072")
        e(f"v_add_u32 v8, {56*1024}, v1")
        for nt in range(7):
            e.wait(ds=f"t{nt}")
            cs, b1 = 128 + 8*nt, 132 + 8*nt
            U = [16 + (tt*7 + nt)*4 + 2*k for tt in range(2) for k in range(2)]
            TT = [0, 0, 1, 1]; KK = [0, 1, 0, 1]
            W = [192 + 2*i for i in range(4)]
            for i in range(4): e(f"v_pk_fma_f32 {vr(W[i],2)}, {vr(cs+2*KK[i],2)}, {vr(122+4*TT[i],2)}, {vr(b1+2*KK[i],2)} op_sel_hi:[1,0,1]")
            for i in range(4): e(f"v_pk_fma_f32 {vr(U[i],2)}, {vr(U[i],2)}, {vr(120+4*TT[i],2)}, {vr(W[i],2)} op_sel_hi:[1,0,1]")
            for i in range(4): e(f"v_pk_mul_f32 {vr(W[i],2)}, {vr(U[i],2)}, {vr(U[i],2)}")
            for i in range(4): e(f"v_pk_fma_f32 {vr(W[i],2)}, {vr(W[i],2)}, s[74:75], v[110:111] op_sel_hi:[1,0,0]")
            for i in range(4): e(f"v_pk_mul_f32 {vr(W[i],2)}, {vr(W[i],2)}, {vr(U[i],2)}")
            for i in range(8): e(f"v_exp_f32 v{192+i}, v{192+i}")
            for i in range(4): e(f"v_pk_add_f32 {vr(W[i],2)}, {vr(W[i],2)}, 1.0 op_sel_hi:[1,0]")
            for i in range(8): e(f"v_rcp_f32 v{192+i}, v{192+i}")
            for i in range(4): e(f"v_pk_mul_f32 {vr(U[i],2)}, {vr(U[i],2)}, {vr(W[i],2)}")
            pb = 200 + 8*((nt >> 1) & 1)
            for i in range(4): e(f"v_cvt_pk_bf16_f32 v{pb + 4*TT[i] + 2*(nt&1) + KK[i]}, v{U[i]}, v{U[i]+1}")
            if nt & 1:
                for tt in range(2):
                    e.vm("st", f"buffer_store_dwordx4 {vr(pb+4*tt)}, {'v8' if tt else 'v1'}, {WS}, s59 offen offset:{(nt>>1)*1024} sc1")
            if nt == 6:
                for tt in range(2):
                    e.vm("st", f"buffer_store_dwordx2 {vr(pb+4*tt,2)}, {'v8' if tt else 'v1'}, {WS}, {T1} offen sc1")
        self.stamp()
        e(f"s_lshl_b32 {T0}, {sRG}, 1\ns_add_u32 {T0}, {T0}, {sRH}\ns_lshl_b32 {T0}, {T0}, 2")
        for i in range(4):
            e(f"s_add_u32 {T1}, {sWV}, {1+i}\ns_and_b32 {T1}, {T1}, 3")
            if i < 3: e(f"s_mul_i32 {T2}, {T1}, {3*4096}\ns_add_u32 {T2}, {T2}, {RED + i*4096}\nv_add_u32 v{9+i}, {T2}, v1")
            e(f"s_add_u32 {T1}, {T1}, {T0}\ns_mul_i32 {T1}, {T1}, 56\ns_mul_i32 {T2}, {sWV}, 14\ns_add_u32 {T1}, {T1}, {T2}\ns_lshl_b32 {T1}, {T1}, 10\ns_add_u32 {T1}, {T1}, {ACT}\nv_add_u32 v{2+i}, {T1}, v1")
        e(f"s_mul_i32 {T2}, {sWV}, {3*4096}\ns_add_u32 {T2}, {T2}, {RED}\nv_add_u32 v12, {T2}, v1")
        e.wait(vm="st")
        self.arrive(CNT + 12288, sRG)

    def stageE(self):
        e = self.e
        self.poll(CNT + 12288, sRG)
        self.stamp()
        def ld(i, sp):
            e.vm(f"a{i}_{sp}", f"buffer_load_dwordx4 {vr(128 + 56*(i&1) + 4*sp)}, v{2+i}, {WS}, {self.sE(sp)} offen sc1")
        for i in range(2):
            for sp in range(14): ld(i, sp)
        for i in range(4):
            for sp in range(14):
                e.wait(vm=f"a{i}_{sp}")
                b = vr(128 + 56*(i&1) + 4*sp)
                for nt in range(4):
                    if i < 3:
                        a = vr(16 + 16*i + 4*nt)
                        e(f"v_mfma_f32_16x16x32_bf16 {a}, {ar(16*sp+4*nt)}, {b}, {'0' if sp == 0 else a}")
                    else:
                        a = ar(224 + 4*nt)
                        e(f"v_mfma_f32_16x16x32_bf16 {a}, {ar(16*sp+4*nt)}, {b}, {a}")
                if i < 2: ld(i + 2, sp)
                if i >= 1 and 2 <= sp < 6:
                    nt = sp - 2
                    e.ds("red", f"ds_write_b128 v{9+i-1}, {vr(16 + 16*(i-1) + 4*nt)} offset:{nt*1024}")
                if i == 3 and sp == 8:
                    e.wait(ds=0)
                    e("s_barrier")
                if i == 3 and 9 <= sp < 12:
                    k = sp - 9
                    for nt in range(4):
                        e.ds("rr", f"ds_read_b128 {vr(64 + 16*k + 4*nt)}, v12 offset:{k*4096 + nt*1024}")
        e.wait(ds=0)
        for i in range(8): e(f"v_pk_add_f32 {vr(64+2*i,2)}, {vr(64+2*i,2)}, {vr(80+2*i,2)}")
        for i in range(8): e(f"v_pk_add_f32 {vr(64+2*i,2)}, {vr(64+2*i,2)}, {vr(96+2*i,2)}")
        for i in range(16): e(f"v_accvgpr_read_b32 v{16+i}, a{224+i}")
        for nt in range(4):
            for k in range(2): e(f"v_pk_add_f32 {vr(16+4*nt+2*k,2)}, {vr(16+4*nt+2*k,2)}, {vr(64+4*nt+2*k,2)}")
            for k in range(2): e(f"v_cvt_pk_bf16_f32 v{32+2*nt+k}, v{16+4*nt+2*k}, v{17+4*nt+2*k}")
            e.vm("out", f"buffer_store_dwordx2 {vr(32+2*nt,2)}, v6, {OUT}, s57 offen offset:{nt*32}")
        self.stamp()

    def write_stamps(self):
        e = self.e
        e(f"s_lshl_b32 {T0}, s2, 2\ns_add_u32 {T0}, {T0}, {sWV}\ns_lshl_b32 {T0}, {T0}, 7\ns_add_u32 {T0}, {T0}, {DIAG}")
        e("s_mov_b64 exec, 1")
        e(f"v_mov_b32 v1, s78\nbuffer_store_dword v1, off, {WS}, {T0}")
        for i in range(self.nst):
            e(f"v_mov_b32 v1, s{80+i}\nbuffer_store_dword v1, off, {WS}, {T0} offset:{4+4*i}")

    def build(self):
        e = self.e
        self.prologue()
        for nm, f in [("A", self.stageA), ("B", self.stageB), ("C", self.stageC), ("D", self.stageD), ("E", self.stageE)]:
            e(f"; ======================= stage {nm}")
            f()
            if self.stop == nm: break
        if self.diag: self.write_stamps()
        e("L_end:\ns_endpgm")
        body, added = e.text()
        hdr = open("cdna_kernels/" + NAME + ".s.ref").read().split("; Override launch")[0]
        k = NAME + "_kernel"
        s = hdr + f"; @launch grid=(256,1,1) block=(256,1,1) lds={LDS_BYTES}\n"
        s += '.amdgcn_target "amdgcn-amd-amdhsa--gfx950"\n.text\n'
        s += f".globl {k}\n.p2align 8\n.type {k},@function\n{k}:\n" + body
        s += f""".section .rodata,"a"
.p2align 6
.amdhsa_kernel {k}
  .amdhsa_next_free_vgpr 512
  .amdhsa_next_free_sgpr 102
  .amdhsa_accum_offset 256
  .amdhsa_group_segment_fixed_size 0
  .amdhsa_kernarg_size 96
  .amdhsa_user_sgpr_count 2
  .amdhsa_user_sgpr_kernarg_segment_ptr 1
  .amdhsa_system_sgpr_workgroup_id_x 1
  .amdhsa_float_denorm_mode_32 3
.end_amdhsa_kernel
"""
        return s, added

if __name__ == "__main__":
    import argparse
    ap = argparse.ArgumentParser()
    ap.add_argument("-o", default="cdna_kernels/" + NAME + ".s")
    ap.add_argument("--diag", action="store_true")
    ap.add_argument("--stop")
    ap.add_argument("--opt", action="append", default=[])
    a = ap.parse_args()
    opt = {}
    for o in a.opt:
        k, v = o.split("="); opt[k] = eval(v)
    s, added = Gen(a.diag, a.stop, opt).build()
    open(a.o, "w").write(s)
    print("wrote", a.o, len(s), "bytes; nops added:", added)
```

```python
import re

REG = re.compile(r'(?<![\w.])([vas])(?:\[(\d+):(\d+)\]|(\d+))(?![\w])')

def regs_of(op):
    out = []
    for m in REG.finditer(op):
        k = m.group(1)
        if m.group(2) is not None:
            out += [(k, i) for i in range(int(m.group(2)), int(m.group(3)) + 1)]
        else:
            out.append((k, int(m.group(4))))
    if re.search(r'\bvcc\b', op): out += [('s', 'vcc')]
    if re.search(r'\bm0\b', op): out += [('s', 'm0')]
    if re.search(r'\bexec\b', op): out += [('s', 'exec')]
    return out

TRANS = ('v_exp_f32', 'v_log_f32', 'v_rcp_f32', 'v_rsq_f32', 'v_sqrt_f32', 'v_sin_f32', 'v_cos_f32')

class Ins:
    def __init__(self, text):
        self.text = text
        t = text.split(';')[0].strip()
        self.is_label = t.endswith(':')
        self.is_dir = t.startswith('.')
        self.op = '' if (self.is_label or self.is_dir or not t) else t.split()[0]
        rest = t[len(self.op):].strip() if self.op else ''
        ops = [o.strip() for o in re.split(r',(?![^\[]*\])', rest)] if rest else []
        self.ops = ops
        op = self.op
        self.mfma = op.startswith('v_mfma')
        self.valu = op.startswith('v_') and not self.mfma
        self.salu = op.startswith('s_')
        self.ds = op.startswith('ds_')
        self.vmem = op.startswith('buffer_') or op.startswith('global_')
        self.dot = op.startswith('v_dot')
        self.trans = any(op.startswith(x) for x in TRANS)
        self.dpp = 'dpp' in op or 'row_' in t or 'quad_perm' in t
        self.permlane = op.startswith('v_permlane')
        self.branch = op.startswith('s_cbranch') or op == 's_branch'
        self.w, self.r = [], []
        self.passes = 0
        self.srcc = []
        self.ab = []
        self.stdata = []
        if not op: return
        R = [regs_of(o) for o in ops]
        flat = lambda l: [x for y in l for x in y]
        if self.mfma:
            self.passes = 8 if '32x32' in op else 4
            self.w = R[0]; self.ab = R[1] + R[2]; self.srcc = R[3]; self.r = self.ab + self.srcc
        elif self.permlane:
            self.w = R[0] + R[1]; self.r = R[0] + R[1]
        elif self.valu:
            self.w = R[0]; self.r = flat(R[1:])
            if op.startswith(('v_fmac', 'v_dot2c', 'v_mac')): self.r = self.r + R[0]
            if op.startswith(('v_add_co', 'v_addc_co', 'v_sub_co')): self.w = R[0] + R[1]; self.r = flat(R[2:])
            if op.startswith('v_cndmask') and len(ops) == 3: self.r = self.r + [('s', 'vcc')]
        elif self.ds:
            if op.startswith('ds_read'): self.w = R[0]; self.r = flat(R[1:])
            else: self.r = flat(R)
        elif self.vmem:
            lds = re.search(r'\blds\b', t) is not None
            self.lds_dma = lds
            if 'load' in op and not lds: self.w = R[0]; self.r = flat(R[1:])
            elif lds: self.r = flat(R) + [('s', 'm0')]
            else:
                self.r = flat(R)
                if op.startswith('global_store'): d = R[1]
                else: d = R[0]
                if len(d) >= 3: self.stdata = d
                if 'atomic' in op and re.search(r'\bsc0\b', t): self.w = R[0]
        elif self.salu:
            if op.startswith(('s_cmp', 's_cbranch', 's_branch', 's_waitcnt', 's_barrier', 's_nop', 's_sleep', 's_endpgm', 's_setprio', 's_bitcmp')):
                self.r = flat(R)
            else:
                self.w = R[0] if R else []; self.r = flat(R[1:])
    def states(self):
        if self.op == 's_nop': return int(self.ops[0]) + 1
        return 1 if self.op else 0

def need(p, c):
    n = 0
    pw = set(p.w)
    vw = {x for x in pw if x[0] in 'va'}
    sw = {x for x in pw if x[0] == 's'}
    cr = set(c.r); cw = set(c.w)
    if p.mfma:
        big = p.passes == 8
        if c.mfma:
            if vw & set(c.ab): n = max(n, 12 if big else 8)
            if vw & set(c.srcc):
                same = (p.w == c.srcc) and p.passes == c.passes
                if not same: n = max(n, 10 if big else 6)
            if vw & cw and not (p.w == c.w and p.w == c.srcc and p.passes == c.passes):
                n = max(n, 12 if big else 8)
        elif c.valu or c.ds or c.vmem:
            if vw & (cr | cw): n = max(n, 12 if big else 8)
        if c.valu and set(p.srcc) & cw: n = max(n, 7 if big else 3)
    if p.valu:
        if c.mfma and vw & cr: n = max(n, 2)
        if c.vmem and sw & cr: n = max(n, 5)
        if c.valu and sw & cr: n = max(n, 4 if c.op.startswith(('v_readlane', 'v_writelane')) else 2)
        if c.salu and sw & cr: n = max(n, 1 if not c.branch else 1)
        if c.op.startswith(('v_readlane', 'v_readfirstlane')) and vw & cr: n = max(n, 1)
        if (c.dpp or c.permlane) and vw & cr: n = max(n, 2)
        if p.trans and c.valu and not c.trans and vw & cr: n = max(n, 1)
        if p.trans and c.trans and vw & cr: n = max(n, 1)
        if p.dot and (c.valu or c.mfma or c.ds or c.vmem) and vw & (cr | cw):
            same_acc = c.dot and c.op == p.op and not (vw & set(x for o in c.ops[1:3] for x in regs_of(o)))
            if not same_acc: n = max(n, 3)
    if p.salu and ('s', 'm0') in pw and c.vmem and getattr(c, 'lds_dma', False): n = max(n, 1)
    if p.stdata and set(p.stdata) & cw: n = max(n, 2)
    return n

def pad(lines):
    out = []; hist = []
    added = 0
    for text in lines:
        i = Ins(text)
        if i.op:
            req = 0; dist = 0
            for p in reversed(hist):
                k = need(p, i) - dist
                if k > req: req = k
                dist += p.states()
                if dist >= 20: break
            if req > 0:
                nop = Ins(f"s_nop {req-1}")
                out.append(nop.text); hist.append(nop); added += 1
            hist.append(i)
            if len(hist) > 40: hist = hist[-40:]
        out.append(text)
    return out, added

class E:
    def __init__(self):
        self.lines = []; self.vmq = []; self.dsq = []; self.nl = 0; self.seen = set(); self.waited = set()
    def __call__(self, s):
        for l in s.split('\n'):
            l = l.strip()
            if l: self.lines.append(l)
    def label(self, b):
        self.nl += 1; return f"{b}_{self.nl}"
    def vm(self, tag, s):
        assert not (tag in self.waited and re.match(r'x\d|W\d|Wq|wo$|w1_\d|rl', tag)), f'{tag} issued after it was waited for'
        self(s); self.vmq.append(tag); self.seen.add(tag)
    def ds(self, tag, s):
        self(s); self.dsq.append(tag); self.seen.add(tag)
    def _cnt(self, q, tags):
        if isinstance(tags, str): tags = [tags]
        for t in tags: assert t in self.seen, f'wait on {t} before it was issued'
        self.waited.update(tags)
        idx = [i for i, t in enumerate(q) if t in tags]
        if not idx: return None
        return len(q) - 1 - max(idx)
    def wait(self, vm=None, ds=None):
        parts = []
        if vm is not None:
            n = 0 if vm == 0 else self._cnt(self.vmq, vm)
            if n is not None:
                self.vmq = self.vmq[len(self.vmq) - n:] if n else []
                parts.append(f"vmcnt({min(n,63)})")
        if ds is not None:
            n = 0 if ds == 0 else self._cnt(self.dsq, ds)
            if n is not None:
                self.dsq = self.dsq[len(self.dsq) - n:] if n else []
                parts.append(f"lgkmcnt({min(n,15)})")
        if parts: self("s_waitcnt " + " ".join(parts))
    def text(self):
        lines, added = pad(self.lines)
        fmt = []
        for l in lines:
            fmt.append(l if (l.endswith(':') or l.startswith('.') or l.startswith(';')) else '    ' + l)
        return "\n".join(fmt) + "\n", added
```

```python
import sys, math, struct
from emit import E

NAME = "sequential_preLN__linear_kernel_hedgehog__dense_activation_gelu__prompt"

def f32(x): return "0x%08x" % struct.unpack("<I", struct.pack("<f", x))[0]

CNT, KVP, ZP, STATS, OB, HB, W2F, ACT, DIAG = 0, 0x100000, 0x200000, 0x210000, 0x300000, 0x500000, 0x700000, 0x900000, 0x1000000
WS_BYTES = 0x1100000
XS, XW = 0, 21504
RL = 86016
BIMG = 86016
CS = 94208
PT = 94720
WPH = 94720
CS1 = 96768
B1T = 97280
WK, WV = 98304, 131072
WO = 98304
W1L = 98304
RED = 0
LDS_BYTES = 163840
X, WQKV, WPHI, WOs, W1s, W2s, OUT, WS, DBG, B1s, B2s = [f"s[{4+4*i}:{7+4*i}]" for i in range(11)]
sWV, sJ, sRB, sRG, sM, sRH, sCB, sROT = "s48", "s49", "s50", "s51", "s52", "s53", "s54", "s55"
sONE = "s70"
T0, T1, T2, T3 = "s72", "s73", "s74", "s75"
G0, G1, G2 = "s3", "s71", "s95"
LOG2E = 1.4426950408889634

def vr(b, n=4): return f"v[{b}:{b+n-1}]"
def ar(b, n=4): return f"a[{b}:{b+n-1}]"

class Gen:
    def __init__(self, diag=False, stop=None, opt=None):
        self.e = E(); self.diag = diag; self.stop = stop; self.nst = 0; self.stnames = []
        self.bgq = []; self.cnt = 0
        self.opt = dict(rotA=7, rotB=0, rotC=0, rotD=0, rotE=0, touch=True, codepf=True, w1_0='q', w1_1='q', w1_2='q', w1_3='b', a_ev0=12, a_ev=16, q_ev=2, q_ev2=16, w2_c=0, w2_x3=0, c_up=10, d_up=5, e_up=12, d_bg=(1,3,5), g_every=8, out_flags='')
        if opt: self.opt.update(opt)

    def stamp(self, name):
        if not self.diag: return
        if name not in self.diag: return
        self.stnames.append(name)
        e = self.e
        e("s_memtime s[76:77]" if self.opt.get("cyc") else "s_memrealtime s[76:77]")
        e("s_waitcnt lgkmcnt(0)"); e.dsq = []
        e(f"s_mov_b32 s{80+self.nst}, s76")
        self.nst += 1

    def dma(self, tag, voff, srd, soff, m0=None, off=0):
        e = self.e
        if m0 is not None: e(f"s_mov_b32 m0, {m0}")
        e.vm(tag, f"buffer_load_dwordx4 {voff}, {srd}, {soff} offen" + (f" offset:{off}" if off else "") + " lds")

    def bg(self, n=1):
        for _ in range(n):
            if not self.bgq: return
            self.bgq.pop(0)()
    def bg_flush(self): self.bg(len(self.bgq))
    def lines(self, txt, every=0):
        for l in txt if isinstance(txt, list) else txt.split("\n"):
            if isinstance(l, tuple): self.e.ds(*l)
            elif callable(l): l()
            else: self.e(l)
            if every:
                self.cnt += 1
                if self.cnt >= every: self.cnt = 0; self.bg(1)

    def arrive(self, cnt_base, sidx, check_init=False):
        e = self.e
        e("s_barrier")
        l = e.label("L_arr")
        e(f"s_cmp_lg_u32 {sWV}, 0\ns_cbranch_scc1 {l}")
        e("s_mov_b64 exec, 1")
        if check_init:
            lp = e.label("L_init")
            e(f"s_mov_b32 {T2}, 0")
            e(f"{lp}:")
            e(f"v_cmp_ne_u32 vcc, 0, v14\ns_cbranch_vccnz {lp}_ok")
            e(f"s_add_u32 {T2}, {T2}, 1\ns_cmp_ge_u32 {T2}, 0x80000\ns_cbranch_scc1 {lp}_ok")
            e(f"buffer_load_dword v14, off, {DBG}, 0 sc1\ns_waitcnt vmcnt(0)\ns_branch {lp}")
            e(f"{lp}_ok:")
        e(f"s_lshl_b32 {T0}, {sidx}, 8\ns_add_u32 {T0}, {T0}, {cnt_base}")
        e("v_mov_b32 v127, 1")
        e(f"buffer_atomic_add v127, off, {WS}, {T0} sc1")
        e("s_mov_b64 exec, -1")
        e(f"{l}:")

    def poll(self, cnt_base, sidx, vtmp="v8"):
        e = self.e
        l = e.label("L_poll")
        e(f"s_cmp_lg_u32 {sWV}, 0\ns_cbranch_scc1 {l}_done")
        e(f"s_lshl_b32 {T0}, {sidx}, 8\ns_add_u32 {T0}, {T0}, {cnt_base}")
        e(f"s_mov_b64 exec, 1\ns_mov_b32 {T2}, 0")
        e(f"{l}:")
        e(f"buffer_load_dword {vtmp}, off, {WS}, {T0} sc1")
        e(f"s_add_u32 {T2}, {T2}, 1\ns_cmp_ge_u32 {T2}, 0x80000\ns_cbranch_scc1 {l}_out")
        e("s_waitcnt vmcnt(0)")
        e(f"v_cmp_gt_u32 vcc, 16, {vtmp}\ns_cbranch_vccnz {l}")
        e(f"{l}_out:")
        e("s_waitcnt vmcnt(0)\ns_mov_b64 exec, -1")
        e(f"{l}_done:")
        e("s_barrier")

    def softmax2(self, P0, P1, O0, O1, vc, vt, every=0):
        e = lambda t: self.lines(t, every)
        m = [vt, vt + 2]
        PP = [P0, P1]; OO = [O0, O1]
        for h in range(2): e(f"v_max3_f32 v{m[h]}, v{PP[h]}, v{PP[h]+1}, v{PP[h]+2}")
        for i in range(3, 15, 2):
            for h in range(2): e(f"v_max3_f32 v{m[h]}, v{m[h]}, v{PP[h]+i}, v{PP[h]+i+1}")
        for h in range(2): e(f"v_max_f32 v{m[h]}, v{m[h]}, v{PP[h]+15}")
        for h in range(2): e(f"v_mul_f32 v{m[h]}, v{m[h]}, v{vc+1}")
        for h in range(2):
            for i in range(0, 16, 2):
                e(f"v_pk_fma_f32 {vr(PP[h]+i,2)}, {vr(PP[h]+i,2)}, {vr(vc,2)}, {vr(m[h],2)} op_sel_hi:[1,0,0]")
        for h in range(2):
            for i in range(16): e(f"v_exp_f32 v{PP[h]+i}, v{PP[h]+i}")
        t = [vt + 4, vt + 12]
        for i in range(4):
            for h in range(2): e(f"v_pk_add_f32 {vr(t[h]+2*i,2)}, {vr(PP[h]+4*i,2)}, {vr(PP[h]+4*i+2,2)}")
        for i in range(2):
            for h in range(2): e(f"v_pk_add_f32 {vr(t[h]+4*i,2)}, {vr(t[h]+4*i,2)}, {vr(t[h]+4*i+2,2)}")
        for h in range(2): e(f"v_pk_add_f32 {vr(t[h],2)}, {vr(t[h],2)}, {vr(t[h]+4,2)}")
        for h in range(2): e(f"v_add_f32 v{t[h]}, v{t[h]}, v{t[h]+1}")
        for h in range(2): e(f"v_rcp_f32 v{t[h]}, v{t[h]}")
        for h in range(2):
            for i in range(0, 16, 2):
                e(f"v_pk_mul_f32 {vr(PP[h]+i,2)}, {vr(PP[h]+i,2)}, {vr(t[h],2)} op_sel_hi:[1,0]")
        for h in range(2):
            for i in range(8): e(f"v_cvt_pk_bf16_f32 v{OO[h]+i}, v{PP[h]+2*i}, v{PP[h]+2*i+1}")

    def prologue(self):
        e = self.e
        e("s_cmp_ge_u32 s2, 256\ns_cbranch_scc1 L_end")
        if self.diag: e("s_memtime s[78:79]" if self.opt.get("cyc") else "s_memrealtime s[78:79]")
        for i, (srd, off) in enumerate([(4, 0), (8, 8), (12, 16), (16, 24), (20, 40), (24, 56), (28, 72), (32, 88), (36, 80), (40, 48), (44, 64)]):
            e(f"s_load_dwordx2 s[{srd}:{srd+1}], s[0:1], {off}")
        for srd, n in [(4, 2097152), (8, 1572864), (12, 16384), (16, 524288), (20, 1835008), (24, 1835008), (28, 2097152), (32, WS_BYTES), (36, 256), (40, 3584), (44, 1024)]:
            e(f"s_mov_b32 s{srd+2}, {n}\ns_mov_b32 s{srd+3}, 0x20000")
        e("v_lshrrev_b32 v1, 6, v0\nv_and_b32 v0, 63, v0")
        e(f"v_readfirstlane_b32 {sWV}, v1")
        if self.opt["codepf"]:
            e("s_getpc_b64 s[60:61]\nL_pc:")
            e(f"s_lshr_b32 {T0}, s2, 3\ns_lshl_b32 {T0}, {T0}, 2\ns_add_u32 {T0}, {T0}, {sWV}\ns_mul_i32 {T0}, {T0}, 320")
            e(f"s_min_u32 {T0}, {T0}, L_end-L_pc-316")
            e(f"s_add_u32 s60, s60, {T0}\ns_addc_u32 s61, s61, 0")
            e("v_mul_u32_u24 v12, 5, v0\nv_and_b32 v12, -4, v12\nv_mov_b32 v13, s61\nv_add_co_u32 v12, vcc, s60, v12\nv_addc_co_u32 v13, vcc, 0, v13, vcc")
            e.vm("pf", "global_load_dword v103, v[12:13], off")
        e(f"s_and_b32 {T0}, s2, 7\ns_lshr_b32 {T1}, s2, 3")
        e(f"s_lshr_b32 {T2}, {T0}, 1\ns_lshl_b32 {T2}, {T2}, 2\ns_lshr_b32 {T3}, {T1}, 3\ns_add_u32 {sRB}, {T2}, {T3}")
        e(f"s_and_b32 {T2}, {T0}, 1\ns_lshl_b32 {T2}, {T2}, 3\ns_and_b32 {T3}, {T1}, 7\ns_add_u32 {sJ}, {T2}, {T3}")
        e(f"s_lshl_b32 {T2}, {T0}, 1\ns_lshr_b32 {T3}, {T1}, 4\ns_add_u32 {sRG}, {T2}, {T3}")
        e(f"s_and_b32 {sM}, {T1}, 15\ns_lshr_b32 {sRH}, {sM}, 3\ns_and_b32 {sCB}, {sM}, 7")
        e(f"s_and_b32 {T2}, {sRB}, 3\ns_lshl_b32 {T2}, {T2}, 1\ns_add_u32 {T2}, {T2}, {sJ}\ns_and_b32 {sROT}, {T2}, {self.opt['rotA']}")
        e(f"s_mov_b32 {sONE}, 0x3f803f80")
        e("v_lshlrev_b32 v1, 4, v0")
        e("v_lshrrev_b32 v12, 2, v0\nv_mul_u32_u24 v2, 3072, v12\nv_and_b32 v12, 3, v0\nv_lshl_add_u32 v2, v12, 4, v2")
        e("v_lshrrev_b32 v12, 4, v0\nv_and_b32 v13, 7, v0\nv_xor_b32 v12, v12, v13\nv_lshrrev_b32 v13, 3, v0\nv_lshlrev_b32 v13, 10, v13")
        e("v_lshl_add_u32 v3, v12, 4, v13\nv_xor_b32 v4, 64, v3")
        e(f"s_lshl_b32 s56, {sRB}, 2\ns_add_u32 s56, s56, {sWV}\ns_lshl_b32 s56, s56, 15")
        e(f"s_mul_i32 s57, {sWV}, {XW}\ns_or_b32 s58, s2, {sWV}")
        e(f"s_mul_i32 s59, {sWV}, {16*3072}\ns_lshl_b32 {T0}, {sJ}, 6\ns_add_u32 s59, s59, {T0}\ns_add_u32 s59, s59, 1024")
        e("s_waitcnt lgkmcnt(0)")

    def q_w(self, tag, psgpr_lines, col0, lds_lines, tiles):
        e = self.e
        first = True
        for (ga, la) in tiles:
            for s in range(4):
                def item(first=first, ga=ga, la=la, s=s):
                    if first:
                        e(psgpr_lines)
                        e(f"s_add_u32 {G0}, {sROT}, {G1}\ns_and_b32 {G0}, {G0}, 7\ns_mul_i32 {G0}, {G0}, {64*3072}\ns_lshl_b32 {G2}, {sJ}, 6\ns_add_u32 {G0}, {G0}, {G2}")
                        e(lds_lines)
                    e(f"s_add_u32 m0, {G1}, {la + s*1024}\ns_add_u32 {G2}, {G0}, {col0*2 + ga + s*16*3072}")
                    self.dma(tag, "v2", WQKV, G2)
                self.bgq.append(item); first = False

    def q_wpos(self, p):
        e = self.e
        def k():
            e(f"s_add_u32 {G0}, {sROT}, {p}\ns_and_b32 {G0}, {G0}, 7\ns_mul_i32 {G0}, {G0}, {64*3072}\ns_add_u32 {G0}, {G0}, s59")
            e(f"s_lshl_b32 {G1}, {sWV}, 10\ns_add_u32 m0, {G1}, {WK + p*4096}")
            self.dma(f"W{p}", "v2", WQKV, G0)
        def v():
            e(f"s_add_u32 m0, {G1}, {WV + p*4096}\ns_add_u32 {G0}, {G0}, 1024")
            self.dma(f"W{p}", "v2", WQKV, G0)
        self.bgq += [k, v]
    def q_wq(self, i):
        self.q_w("Wq", f"s_lshl_b32 {G1}, {sWV}, 1\ns_add_u32 {G1}, {G1}, {i}", 0, f"s_add_u32 {G1}, s57, {(3+i)*4096}", [(0, 0)])

    def q_x(self, p, slot):
        e = self.e
        for q in range(4):
            def item(q=q):
                if q == 0:
                    e(f"s_add_u32 {G0}, {sROT}, {p}\ns_and_b32 {G0}, {G0}, 7\ns_lshl_b32 {G0}, {G0}, 7\ns_add_u32 {G0}, {G0}, s56")
                    e(f"s_add_u32 m0, s57, {slot*4096}")
                else: e(f"s_add_u32 {G0}, {G0}, {8192-1024}")
                self.dma(f"x{p}", "v4" if q & 1 else "v3", X, G0, off=q*1024)
            self.bgq.append(item)

    def colsum_part(self, items, every=0):
        e = self.e
        L = []
        for i, (va, off, acc) in enumerate(items):
            L.append((f"cs{i//4}", f"ds_read_b64_tr_b16 {vr(64+4*i,2)}, {va} offset:{off}"))
            L.append((f"cs{i//4}", f"ds_read_b64_tr_b16 {vr(66+4*i,2)}, {va} offset:{off+256}"))
        for g in range(0, len(items), 4):
            L.append(lambda g=g: e.wait(ds=f"cs{g//4}"))
            for r in range(4):
                for i in range(g, g + 4): L.append(f"v_dot2c_f32_bf16 {items[i][2]}, {sONE}, v{64+4*i+r}")
        self.lines(L, every)

    def wfrag(self, tile, sp, buf):
        e = self.e
        off = tile * 32768 + sp * 1024
        e.ds(f"wf{tile}_{sp}", f"ds_read_b64_tr_b16 {vr(buf,2)}, v5 offset:{off}")
        e.ds(f"wf{tile}_{sp}", f"ds_read_b64_tr_b16 {vr(buf+2,2)}, v5 offset:{off+256}")

    def xstats(self, p, every=0):
        L = []
        for i in range(16):
            r = 128 + 16 * p + i
            L += [f"v_dot2c_f32_bf16 v{96+(i&1)}, {sONE}, v{r}", f"v_dot2c_f32_bf16 v{98+(i&1)}, v{r}, v{r}"]
        self.lines(L, every)

    def xread(self, p, slot):
        e = self.e
        for s in range(4):
            e.ds(f"xf{p}", f"ds_read_b128 {vr(128+16*p+4*s)}, v{6+s} offset:{slot*4096}")

    def table_from_partials(self, pt_off, cs_off, vtmp, va, vb, mask=None):
        e = self.e
        if mask: e(f"v_and_b32 {va}, {mask}, v0\nv_lshlrev_b32 {vb}, 2, {va}\nv_lshlrev_b32 {va}, 4, {va}\nv_add_u32 {va}, {PT}, {va}")
        else: e(f"v_add_u32 {va}, {PT}, v1\nv_lshlrev_b32 {vb}, 2, v0")
        e.ds("pt", f"ds_read_b128 {vr(vtmp)}, {va} offset:{pt_off}")
        e(f"v_add_u32 {vb}, {cs_off}, {vb}")
        e.wait(ds="pt")
        e(f"v_add_f32 v{vtmp}, v{vtmp}, v{vtmp+1}\nv_add_f32 v{vtmp+2}, v{vtmp+2}, v{vtmp+3}\nv_add_f32 v{vtmp}, v{vtmp}, v{vtmp+2}")
        e.ds("ptw", f"ds_write_b32 {vb}, v{vtmp}")

    def stageA(self):
        e = self.e; o = self.opt
        e("s_cmp_lg_u32 s58, 0\ns_cbranch_scc1 L_noinit")
        e(f"v_lshlrev_b32 v12, 8, v0\nv_mov_b32 v13, 0\nbuffer_store_dword v13, v12, {WS}, 0 offen sc1")
        e("L_noinit:")
        self.stamp("karg")
        self.q_wpos(0); self.q_x(0, 0); self.bg_flush()
        self.stamp("iss0")
        self.q_wpos(1); self.q_x(1, 1); self.bg_flush()
        self.stamp("iss1")
        e(f"s_lshl_b32 {T0}, {sJ}, 10")
        self.dma("wphi", "v1", WPHI, T0, m0=WPH)
        for p in range(2, 5): self.q_wpos(p); self.q_x(p, p)
        L = "v_lshrrev_b32 v12, 5, v0\nv_lshlrev_b32 v12, 9, v12\nv_bfe_u32 v13, v0, 2, 2\nv_lshl_add_u32 v12, v13, 6, v12\n"
        L += "v_bfe_u32 v13, v0, 4, 1\nv_lshl_add_u32 v12, v13, 5, v12\nv_and_b32 v13, 3, v0\nv_lshl_add_u32 v12, v13, 3, v12\n"
        L += f"v_add_u32 v5, {WK}, v12\n"
        L += "v_and_b32 v12, 31, v0\nv_lshlrev_b32 v13, 7, v12\nv_add_u32 v13, s57, v13\nv_bfe_u32 v12, v0, 1, 3\nv_lshrrev_b32 v14, 5, v0\nv_xor_b32 v12, v12, v14\n"
        for b in range(4):
            L += f"v_add_u32 v15, {b}, v10\nv_and_b32 v15, 3, v15\nv_lshl_add_u32 v{112+b}, v15, 10, v5\nv_lshlrev_b32 v15, 1, v15\nv_xor_b32 v14, v15, v12\nv_lshl_add_u32 v{6+b}, v14, 4, v13\n"
        for r in range(96, 103): L += f"v_mov_b32 v{r}, 0\n"
        L += "v_lshrrev_b32 v13, 5, v0\nv_lshlrev_b32 v13, 7, v13\nv_bfe_u32 v14, v0, 2, 2\nv_lshl_add_u32 v13, v14, 5, v13\n"
        L += "v_bfe_u32 v14, v0, 4, 1\nv_lshl_add_u32 v13, v14, 4, v13\nv_bfe_u32 v14, v0, 1, 1\nv_lshl_add_u32 v13, v14, 3, v13\n"
        L += f"v_add_u32 v13, {WPH}, v13\nv_bfe_u32 v14, v0, 2, 1\nv_mul_u32_u24 v14, 0x8000, v14\nv_lshl_or_b32 v14, v14, 16, v14"
        e(f"v_mov_b32 v10, {sWV}")
        self.lines(L, o["a_ev0"])
        self.wo_setup()
        accK, accV = 16, 32
        def mf(acc, a, b, first):
            e(f"v_mfma_f32_32x32x16_bf16 {vr(acc,16)}, {vr(a)}, {vr(b)}, {'0' if first else vr(acc,16)}")
        def wf(p, b):
            for t in range(2):
                off = t*32768 + p*4096
                e.ds(f"f{p}", f"ds_read_b64_tr_b16 {vr(64+8*b+4*t,2)}, v{112+b} offset:{off}")
                e.ds(f"f{p}", f"ds_read_b64_tr_b16 {vr(66+8*b+4*t,2)}, v{112+b} offset:{off+256}")
        def xr(p):
            for b in range(4): e.ds(f"f{p}", f"ds_read_b128 {vr(128+16*p+4*b)}, v{6+b} offset:{(p%5)*4096}")
        self.stamp("setup")
        e.wait(vm="x0")
        self.stamp("x0")
        e("s_cmp_lg_u32 s58, 0\ns_cbranch_scc1 L_noinit2")
        e(f"v_mov_b32 v15, 1\ns_mov_b64 exec, 1\nbuffer_store_dword v15, off, {DBG}, 0 sc1\ns_mov_b64 exec, -1")
        e("L_noinit2:")
        e("s_barrier")
        self.stamp("W0")
        xr(0)
        for b in range(4): wf(0, b)
        self.bg(2)
        for p in range(8):
            e.wait(ds=f"f{p}")
            self.stamp(f"A_p{p}")
            if p < 3: self.q_wpos(5 + p); self.q_x(5 + p, p)
            if p == 3:
                self.q_touch(); self.q_wq(0)
            if p == 4: self.q_wq(1); self.q_side()
            if p >= 5: self.q_wo(2*(p-5)); self.q_wo(2*(p-5) + 1)
            for r in range(4): e(f"v_dot2c_f32_bf16 v100, {sONE}, v{64+r}\nv_dot2c_f32_bf16 v101, {sONE}, v{68+r}")
            if p == 7:
                e(f"s_lshl_b32 {T0}, {sWV}, 2\ns_add_u32 {T0}, {T0}, {PT}\nv_add_u32 v12, {T0}, v1")
                e("v_permlane32_swap_b32 v100, v101\nv_add_f32 v100, v100, v101")
                e.ds("ptw", "ds_write_b32 v12, v100")
                self.xstats(7)
                e.wait(ds=0)
                e("s_barrier")
                self.q_wo(6); self.q_wo(7)
                e(f"v_add_u32 v12, {PT}, v1")
                e.ds("pt", "ds_read_b128 v[48:51], v12")
                mf(accK, 64, 128 + 16*p, False)
                self.ln_finalize()
                mf(accK, 72, 128 + 16*p + 4, False)
                e(f"v_lshlrev_b32 v13, 2, v0\nv_add_u32 v13, {CS}, v13\nv_lshrrev_b32 v12, 5, v0\nv_lshlrev_b32 v12, 4, v12\nv_add_u32 v12, {CS}, v12")
                e.wait(ds="pt")
                mf(accK, 80, 128 + 16*p + 8, False)
                e("v_add_f32 v48, v48, v49\nv_add_f32 v50, v50, v51\nv_add_f32 v48, v48, v50")
                e.ds("ptw", "ds_write_b32 v13, v48")
                mf(accK, 88, 128 + 16*p + 12, False)
                for i in range(4): e.ds("cstK", f"ds_read_b128 {vr(48+4*i)}, v12 offset:{i*32}")
                mf(accV, 68, 128 + 16*p, False)
                for i in range(4): e.ds("cstV", f"ds_read_b128 {vr(112+4*i)}, v12 offset:{128 + i*32}")
                for b in range(1, 4):
                    mf(accV, 68 + 8*b, 128 + 16*p + 4*b, False); self.bg(1)
                break
            for b in range(4):
                mf(accK, 64 + 8*b, 128 + 16*p + 4*b, p == 0 and b == 0)
                if b != 2: self.bg(1)
                else: wf(p + 1, 0)
                mf(accV, 68 + 8*b, 128 + 16*p + 4*b, p == 0 and b == 0)
                if b == 1:
                    e.wait(vm=f"x{p+1}")
                    e("s_barrier")
                    xr(p + 1)
                elif b == 2: wf(p + 1, 1)
                elif b == 3: wf(p + 1, 2); wf(p + 1, 3)
                else: self.bg(1)
            if p == 0:
                e.wait(vm="wphi")
                for h in range(2):
                    e.ds("f1", f"ds_read_b64_tr_b16 {vr(104+4*h,2)}, v13 offset:{h*512}")
                    e.ds("f1", f"ds_read_b64_tr_b16 {vr(106+4*h,2)}, v13 offset:{h*512+256}")
            if p == 1:
                for r in range(104, 112): e(f"v_xor_b32 v{r}, v{r}, v14")
            self.xstats(p, o["a_ev"])
        self.stamp("KVgemm")
        e.wait(ds="cstK")
        for r in range(16): e(f"v_fmac_f32 v{accK+r}, v96, v{48+r}")
        for i in range(8): e(f"v_cvt_pk_bf16_f32 v{48+i}, v{accK+2*i}, v{accK+2*i+1}")
        mf(64, 104, 48, True); self.bg(1); mf(80, 108, 52, True); self.bg(1)
        e.wait(ds="cstV")
        for r in range(16): e(f"v_fmac_f32 v{accV+r}, v96, v{112+r}")
        e("v_and_b32 v13, 31, v0\nv_lshlrev_b32 v13, 5, v13\nv_add_u32 v13, s57, v13\nv_lshrrev_b32 v15, 5, v0\nv_lshl_add_u32 v14, v15, 10, v13\nv_lshl_add_u32 v13, v15, 4, v13")
        for i in range(8): e(f"v_pk_mul_f32 {vr(accV+2*i,2)}, {vr(accV+2*i,2)}, {vr(98,2)} op_sel_hi:[1,0]")
        for i in range(8): e(f"v_cvt_pk_bf16_f32 v{56+i}, v{accV+2*i}, v{accV+2*i+1}")
        e.ds("img", f"ds_write_b128 v13, {vr(56)} offset:4096")
        e.ds("img", f"ds_write_b128 v13, {vr(60)} offset:5120")
        self.softmax2(64, 80, 32, 40, 100, 16, every=16)
        self.bg_flush()
        for h in range(2):
            e.ds("img", f"ds_write_b128 v14, {vr(32+8*h)} offset:{h*2048}")
            e.ds("img", f"ds_write_b128 v14, {vr(36+8*h)} offset:{h*2048+16}")
        e("v_lshrrev_b32 v13, 2, v0\nv_lshlrev_b32 v13, 5, v13\nv_and_b32 v15, 3, v0\nv_lshl_add_u32 v13, v15, 3, v13")
        e(f"s_lshr_b32 {T0}, {sWV}, 1\ns_lshl_b32 {T0}, {T0}, 10\ns_add_u32 {T0}, {T0}, 4096\nv_add_u32 v15, {T0}, v13")
        e(f"v_lshl_add_u32 v13, {sWV}, 10, v13")
        for r in range(56, 60): e(f"v_mov_b32 v{r}, {sONE}")
        e(f"s_lshl_b32 {T0}, {sJ}, 4\ns_add_u32 {T0}, {T0}, {sRB}\ns_lshl_b32 {T0}, {T0}, 2\ns_add_u32 {T0}, {T0}, {sWV}\ns_lshl_b32 {T0}, {T0}, 10\ns_add_u32 {T0}, {T0}, {KVP}")
        e(f"s_lshl_b32 {T1}, {sJ}, 2\ns_add_u32 {T1}, {T1}, {sWV}\ns_lshl_b32 {T1}, {T1}, 4\ns_add_u32 {T1}, {T1}, {sRB}\ns_lshl_b32 {T1}, {T1}, 6\ns_add_u32 {T1}, {T1}, {ZP}")
        e.wait(vm="rl", ds=0)
        e("s_barrier")
        self.stamp("img")
        for w in range(4):
            off = w*XW
            e.ds(f"kva{w}", f"ds_read_b64_tr_b16 {vr(64+8*w,2)}, v13 offset:{off}")
            e.ds(f"kva{w}", f"ds_read_b64_tr_b16 {vr(66+8*w,2)}, v13 offset:{off+512}")
            e.ds(f"kva{w}", f"ds_read_b64_tr_b16 {vr(68+8*w,2)}, v15 offset:{off}")
            e.ds(f"kva{w}", f"ds_read_b64_tr_b16 {vr(70+8*w,2)}, v15 offset:{off+512}")
        e.vm("init", f"buffer_load_dword v14, off, {DBG}, 0 sc1")
        for w in range(4):
            e.wait(ds=f"kva{w}")
            e(f"v_mfma_f32_16x16x32_bf16 {vr(48)}, {vr(64+8*w)}, {vr(68+8*w)}, {'0' if w == 0 else vr(48)}")
            e(f"v_mfma_f32_16x16x32_bf16 {vr(52)}, {vr(64+8*w)}, {vr(56)}, {'0' if w == 0 else vr(52)}")
        for b in range(4):
            e(f"v_add_u32 v15, {b}, v10\nv_and_b32 v15, 3, v15\nv_lshl_add_u32 v{116+b}, v15, 10, v5\nv_subrev_u32 v{116+b}, {WK-12288}, v{116+b}\nv_add_u32 v{120+b}, {2*XW}, v{116+b}")
        e("v_and_b32 v13, 0x30, v0")
        e.vm("st", f"buffer_store_dwordx4 {vr(48)}, v1, {WS}, {T0} offen sc1")
        e("s_mov_b32 exec_lo, 0x00010001\ns_mov_b32 exec_hi, 0x00010001")
        e.vm("st", f"buffer_store_dwordx4 {vr(52)}, v13, {WS}, {T1} offen sc1")
        e("s_mov_b64 exec, -1")
        self.stamp("kvst")
        self.relayout()
        def qaddr(p, b):
            w = p >> 1
            return (f"v{116+b}", w*XW + (p & 1)*4096) if w < 2 else (f"v{120+b}", (w-2)*XW + (p & 1)*4096)
        self.colsum_part([(*qaddr(p, 0), "v102") for p in range(8)])
        for p in range(8):
            for b in range(4):
                va, off = qaddr(p, b)
                e.ds("qf", f"ds_read_b64_tr_b16 {ar(16*p+4*b,2)}, {va} offset:{off}")
                e.ds("qf", f"ds_read_b64_tr_b16 {ar(16*p+4*b+2,2)}, {va} offset:{off+256}")
        e(f"s_lshl_b32 {T0}, {sWV}, 2\ns_add_u32 {T0}, {T0}, {PT+1024}\nv_and_b32 v15, 31, v0\nv_lshlrev_b32 v15, 4, v15\nv_add_u32 v15, {T0}, v15")
        e("v_mov_b32 v103, v102\nv_permlane32_swap_b32 v102, v103\nv_add_f32 v102, v102, v103")
        e.ds("ptw", "ds_write_b32 v15, v102")
        self.w1_voffs()
        e.wait(vm=0, ds=0)
        self.arrive(CNT, sJ, check_init=True)
        self.stamp("arr1")
        for i in range(3):
            if o[f"w1_{i}"] == "q": self.q_w1(i)
        self.bg(2)
        self.wo_addr()
        WL = []
        for k in range(28):
            s_, nt = k >> 2, k & 3
            WL.append(("woa", f"ds_read_b64_tr_b16 {ar(128+4*k,2)}, v{2+nt} offset:{s_*4096}"))
            WL.append(("woa", f"ds_read_b64_tr_b16 {ar(130+4*k,2)}, v{2+nt} offset:{s_*4096+1024}"))
        for sp in range(32):
            e(f"v_mfma_f32_32x32x16_bf16 {vr(16,16)}, {ar(4*sp)}, {vr(128+4*sp)}, {'0' if sp == 0 else vr(16,16)}")
            if sp == 0: self.table_from_partials(1024, CS + 256, 48, "v13", "v15", mask=31)
            elif sp == 2:
                for i in range(4): e.ds("cst", f"ds_read_b128 {vr(48+4*i)}, v12 offset:{256 + i*32}")
            elif sp >= 4:
                for _ in range(2): e.ds(*WL.pop(0))
            if sp % o["q_ev"] == 0: self.bg(1)
        assert not WL
        e.wait(ds="cst")
        for r in range(16): e(f"v_fmac_f32 v{16+r}, v96, v{48+r}")
        for i in range(8): e(f"v_cvt_pk_bf16_f32 v{48+i}, v{16+2*i}, v{16+2*i+1}")
        mf(64, 104, 48, True); mf(80, 108, 52, True)
        self.rotE()
        self.softmax2(64, 80, 32, 40, 100, 16, every=o["q_ev2"])
        self.bg_flush()
        e.wait(ds=0)
        self.stamp("phiq")

    def ln_finalize(self):
        e = self.e
        e("v_add_f32 v96, v96, v97\nv_add_f32 v98, v98, v99\nv_mov_b32 v97, v96\nv_mov_b32 v99, v98")
        e("v_permlane32_swap_b32 v96, v97\nv_permlane32_swap_b32 v98, v99")
        e("v_add_f32 v96, v96, v97\nv_add_f32 v98, v98, v99")
        e(f"v_mul_f32 v96, {f32(-1/512)}, v96\nv_mul_f32 v98, {f32(1/512)}, v98")
        e(f"v_fma_f32 v98, -v96, v96, v98\nv_max_f32 v98, 0, v98\nv_add_f32 v98, {f32(1e-5)}, v98\nv_rsq_f32 v98, v98")
        e(f"v_mul_f32 v100, {f32(LOG2E)}, v98\nv_mul_f32 v101, {f32(-LOG2E)}, v98")

    def rl_ids(self):
        e = self.e
        e(f"s_lshl_b32 s59, s2, 1\ns_add_u32 s59, s59, {sWV}")
        e(f"s_cmp_ge_u32 {sWV}, 2\ns_cselect_b32 s59, 448, s59\ns_cmp_ge_u32 s59, 448")

    def q_side(self):
        e = self.e
        def rl():
            self.rl_ids()
            e("s_cbranch_scc1 L_norl1")
            e(f"s_lshr_b32 {G0}, s59, 3\ns_mul_i32 {G1}, {G0}, 37\ns_lshr_b32 {G1}, {G1}, 8")
            e(f"s_mul_i32 {G2}, {G1}, 7\ns_sub_u32 {G0}, {G0}, {G2}")
            e(f"s_mul_i32 {G1}, {G1}, 224\ns_lshl_b32 {G2}, {G0}, 5\ns_add_u32 {G1}, {G1}, {G2}")
            e(f"s_cmp_ge_u32 {G0}, 4\ns_cselect_b32 {G2}, 16, 0\ns_sub_u32 {G1}, {G1}, {G2}")
            e(f"s_cmp_eq_u32 {G0}, 3\ns_cselect_b32 {G2}, 112, 16\ns_add_u32 {G2}, {G2}, {G1}")
            e(f"s_and_b32 {G0}, s59, 7\ns_lshl_b32 {G0}, {G0}, 7")
            e(f"s_lshl_b32 {G1}, {G1}, 10\ns_add_u32 {G1}, {G1}, {G0}\ns_lshl_b32 {G2}, {G2}, 10\ns_add_u32 {G2}, {G2}, {G0}")
            e("v_lshrrev_b32 v14, 4, v0\nv_lshlrev_b32 v14, 1, v14\nv_and_b32 v15, 7, v0\nv_xor_b32 v14, v14, v15\nv_lshrrev_b32 v15, 3, v0\nv_lshlrev_b32 v15, 10, v15\nv_lshl_add_u32 v15, v14, 4, v15")
            e(f"s_lshl_b32 {G0}, {sWV}, 12\ns_add_u32 m0, {G0}, {RL}")
            e(f"buffer_load_dwordx4 v15, {W2s}, {G1} offen lds")
            e(f"s_add_u32 {G1}, {G1}, {8192-1024}\nbuffer_load_dwordx4 v15, {W2s}, {G1} offen offset:1024 lds")
            e(f"s_add_u32 m0, m0, 2048\ns_nop 0\nbuffer_load_dwordx4 v15, {W2s}, {G2} offen lds")
            e(f"s_add_u32 {G2}, {G2}, {8192-1024}\nbuffer_load_dwordx4 v15, {W2s}, {G2} offen offset:1024 lds")
            e("L_norl1:")
        self.bgq.append(rl)
        self.bgq.append(lambda: e.vm("rl", f"buffer_load_dword v103, off, {B2s}, 0"))

    def q_touch(self):
        e = self.e
        def touch():
            e(f"s_lshl_b32 {G0}, s2, 2\ns_add_u32 {G0}, {G0}, {sWV}\ns_mul_i32 {G1}, {G0}, 1792\nv_mul_u32_u24 v15, 28, v0")
            e.vm("touch", f"buffer_load_dword v103, v15, {W1s}, {G1} offen")
        if self.opt["touch"]: self.bgq.append(touch)

    def relayout(self):
        e = self.e
        self.rl_ids()
        e("s_cbranch_scc1 L_norl2")
        e("v_lshrrev_b32 v15, 2, v0\nv_lshlrev_b32 v13, 7, v15\nv_and_b32 v15, 6, v15")
        e("v_bfe_u32 v103, v0, 1, 1\nv_lshl_add_u32 v13, v103, 4, v13\nv_and_b32 v103, 1, v0\nv_lshl_add_u32 v13, v103, 3, v13")
        e(f"s_lshl_b32 {T0}, {sWV}, 12\ns_add_u32 {T0}, {T0}, {RL}\nv_add_u32 v13, {T0}, v13")
        for nt in range(4):
            e(f"v_xor_b32 v103, {2*nt}, v15\nv_lshl_add_u32 v103, v103, 4, v13")
            e(f"ds_read_b64_tr_b16 {vr(80+4*nt,2)}, v103")
            e(f"ds_read_b64_tr_b16 {vr(82+4*nt,2)}, v103 offset:2048")
        e(f"s_and_b32 {T0}, s59, 7\ns_mul_i32 {T0}, {T0}, 56\ns_lshr_b32 {T1}, s59, 3\ns_add_u32 {T0}, {T0}, {T1}\ns_lshl_b32 {T0}, {T0}, 12\ns_add_u32 {T0}, {T0}, {W2F}")
        e("s_waitcnt lgkmcnt(0)")
        for nt in range(4):
            e(f"buffer_store_dwordx4 {vr(80+4*nt)}, v1, {WS}, {T0} offen offset:{nt*1024} sc1")
        e("L_norl2:")

    def wo_setup(self):
        e = self.e
        e(f"s_and_b32 {T2}, {sRG}, 1\ns_lshl_b32 {T2}, {T2}, 3\ns_lshl_b32 {T3}, {sCB}, 1\ns_add_u32 {T2}, {T2}, {T3}\ns_add_u32 {T2}, {T2}, {sRH}\ns_and_b32 s60, {T2}, {self.opt['rotC']}")
        e("v_lshrrev_b32 v15, 4, v0\nv_lshlrev_b32 v15, 1, v15\nv_and_b32 v11, 7, v0\nv_xor_b32 v15, v15, v11\nv_lshrrev_b32 v11, 3, v0\nv_lshlrev_b32 v11, 10, v11\nv_lshl_add_u32 v11, v15, 4, v11")
        e(f"s_lshl_b32 {T2}, {sWV}, 13\ns_lshl_b32 {T3}, {sCB}, 7\ns_add_u32 s61, {T2}, {T3}")

    def q_wo(self, i):
        e = self.e
        for s in (i, i + 8):
            def item(s=s):
                e(f"s_add_u32 {G0}, s60, {s}\ns_and_b32 {G0}, {G0}, 15\ns_lshl_b32 {G0}, {G0}, 15\ns_add_u32 {G0}, {G0}, s61")
                e(f"s_lshl_b32 {G1}, {sWV}, 10\ns_add_u32 m0, {G1}, {WO + s*4096}")
                self.dma("wo", "v11", WOs, G0)
            self.bgq.append(item)

    def wo_addr(self):
        e = self.e
        e("v_lshrrev_b32 v7, 5, v0\nv_lshlrev_b32 v7, 4, v7\nv_bfe_u32 v8, v0, 2, 3\nv_add_u32 v7, v7, v8\nv_lshlrev_b32 v7, 7, v7\nv_and_b32 v8, 6, v8")
        e(f"v_bfe_u32 v6, v0, 1, 1\nv_lshl_add_u32 v7, v6, 4, v7\nv_and_b32 v6, 1, v0\nv_lshl_add_u32 v7, v6, 3, v7\nv_add_u32 v7, {WO}, v7")
        for nt in range(4): e(f"v_xor_b32 v6, {2*nt}, v8\nv_lshl_add_u32 v{2+nt}, v6, 4, v7")

    def w1_voffs(self):
        e = self.e
        for q in range(7):
            e(f"v_add_u32 v7, {64*q}, v0\nv_mul_u32_u24 v8, 4682, v7\nv_lshrrev_b32 v8, 16, v8\nv_mul_u32_u24 v{120+q}, {3584-224}, v8\nv_lshl_add_u32 v{120+q}, v7, 4, v{120+q}")
        e(f"s_and_b32 {T0}, {sRG}, 1\ns_lshl_b32 {T0}, {T0}, 3\ns_add_u32 {T0}, {T0}, {sM}\ns_and_b32 s61, {T0}, {self.opt['rotD']}")

    def q_w1(self, i):
        e = self.e
        for q in range(7):
            def item(q=q):
                if q == 0:
                    e(f"s_add_u32 {G0}, {sWV}, {4*i}\ns_add_u32 {G0}, {G0}, s61\ns_and_b32 {G0}, {G0}, 15\ns_mul_i32 {G0}, {G0}, {32*3584}\ns_mul_i32 {G2}, {sM}, 224\ns_add_u32 {G0}, {G0}, {G2}")
                    if i < 3: e(f"s_mul_i32 {G1}, {sWV}, {XW}\ns_add_u32 m0, {G1}, {i*7168}")
                    else: e(f"s_mul_i32 {G1}, {sWV}, 7168\ns_add_u32 m0, {G1}, {W1L}")
                else: e("s_add_u32 m0, m0, 1024")
                self.dma(f"w1_{i}", f"v{120+q}", W1s, G0)
            self.bgq.append(item)

    def rotE(self):
        e = self.e
        e(f"s_mul_i32 {T0}, {sCB}, 7\ns_lshr_b32 {T0}, {T0}, 2\ns_and_b32 {T1}, {sRG}, 1\ns_lshl_b32 {T1}, {T1}, 1\ns_add_u32 {T1}, {T1}, {sRH}\ns_mul_i32 {T1}, {T1}, 3\ns_add_u32 {T0}, {T0}, {T1}")
        e(f"s_cmp_ge_u32 {T0}, 14\ns_cselect_b32 {T1}, 14, 0\ns_sub_u32 {T0}, {T0}, {T1}")
        if not self.opt["rotE"]: e(f"s_mov_b32 {T0}, 0")
        for sp in range(14):
            e(f"s_lshl_b32 {self.sE(sp)}, {T0}, 10")
            if sp < 13: e(f"s_add_u32 {T0}, {T0}, 1\ns_cmp_ge_u32 {T0}, 14\ns_cselect_b32 {T0}, 0, {T0}")
        e(f"s_lshl_b32 {T0}, {sCB}, 2\ns_add_u32 {T0}, {T0}, {sWV}\ns_mul_i32 {T0}, {T0}, {14*4096}\ns_add_u32 {T0}, {T0}, {W2F}\nv_add_u32 v9, {T0}, v1")
    def sE(self, sp): return f"s{62+sp}" if sp < 8 else f"s{96+sp-8}"

    def q_w2(self, sp0, sp1):
        e = self.e
        for sp in range(sp0, sp1):
            for nt in range(4):
                def item(sp=sp, nt=nt):
                    if nt == 0: e(f"s_lshl_b32 {G0}, {self.sE(sp)}, 2")
                    e.vm("w2", f"buffer_load_dwordx4 {ar(16*sp+4*nt)}, v9, {WS}, {G0} offen offset:{nt*1024} sc1")
                self.bgq.append(item)

    def stageB(self):
        e = self.e; o = self.opt
        e("v_and_b32 v10, 3, v0\nv_bfe_u32 v11, v0, 2, 1\nv_lshl_add_u32 v10, v11, 3, v10\nv_bfe_u32 v11, v0, 3, 1\nv_lshl_add_u32 v10, v11, 2, v10\nv_lshlrev_b32 v10, 6, v10")
        e("v_lshrrev_b32 v11, 4, v0\nv_lshl_add_u32 v10, v11, 3, v10")
        e(f"s_lshr_b32 {T0}, {sWV}, 1\ns_mul_i32 {T0}, {T0}, 1088\ns_and_b32 {T1}, {sWV}, 1\ns_lshl_b32 {T1}, {T1}, 5\ns_add_u32 {T0}, {T0}, {T1}\ns_add_u32 {T0}, {T0}, {BIMG}")
        e(f"v_add_u32 v10, {T0}, v10\nv_and_b32 v11, 15, v0\nv_lshlrev_b32 v11, 1, v11\nv_add_u32 v11, {T0}, v11")
        e(f"v_and_b32 v12, 31, v0\nv_min_u32 v12, 16, v12\nv_lshlrev_b32 v12, 6, v12\nv_lshrrev_b32 v13, 5, v0\nv_lshl_add_u32 v12, v13, 5, v12\nv_add_u32 v12, {BIMG}, v12")
        e("v_bfe_u32 v13, v0, 4, 1\nv_lshlrev_b32 v13, 14, v13\nv_and_b32 v8, 15, v0\nv_lshl_add_u32 v13, v8, 4, v13\nv_lshrrev_b32 v8, 5, v0\nv_lshl_add_u32 v13, v8, 8, v13")
        e("v_lshlrev_b32 v7, 2, v0")
        self.poll(CNT, sJ)
        self.stamp("X1")
        e(f"s_lshl_b32 {T0}, {sJ}, 2\ns_add_u32 {T0}, {T0}, {sWV}\ns_lshl_b32 {T0}, {T0}, 10\ns_add_u32 {T0}, {T0}, {ZP}")
        for i in range(4):
            e.vm("z", f"buffer_load_dword v{192+i}, v7, {WS}, {T0} offen offset:{i*256} sc1")
        e(f"s_lshl_b32 {T0}, {sJ}, 6\ns_add_u32 {T0}, {T0}, {sWV}\ns_lshl_b32 {T0}, {T0}, 10\ns_add_u32 {T0}, {T0}, {KVP}")
        e(f"s_and_b32 {T1}, {sRB}, {o['rotB']}\ns_lshl_b32 {T1}, {T1}, 12")
        for i in range(16):
            e(f"s_add_u32 {T2}, {T0}, {T1}")
            e.vm(f"kv{i}", f"buffer_load_dwordx4 {vr(128+4*i)}, v1, {WS}, {T2} offen sc1")
            if i < 15: e(f"s_add_u32 {T1}, {T1}, 4096\ns_and_b32 {T1}, {T1}, 0xffff")
        for i in range(4):
            if o[f"w1_{i}"] == "b": self.q_w1(i)
        e.wait(vm="z")
        e("v_add_f32 v192, v192, v193\nv_add_f32 v194, v194, v195\nv_add_f32 v192, v192, v194\nv_mov_b32 v193, v192")
        e("v_permlane32_swap_b32 v192, v193\nv_add_f32 v192, v192, v193\nv_mov_b32 v193, v192")
        e("v_permlane16_swap_b32 v192, v193\nv_add_f32 v192, v192, v193\nv_cvt_pk_bf16_f32 v192, v192, v192")
        e.ds("bi", "ds_write_b16 v11, v192 offset:1024")
        for i in range(2, 16, 2):
            e.wait(vm=f"kv{i+1}")
            for ii in (i, i + 1):
                a = 128 + 4*(ii & 1)
                for k in range(2): e(f"v_pk_add_f32 {vr(a+2*k,2)}, {vr(a+2*k,2)}, {vr(128+4*ii+2*k,2)}")
            self.bg(1)
        for k in range(2): e(f"v_pk_add_f32 {vr(128+2*k,2)}, {vr(128+2*k,2)}, {vr(132+2*k,2)}")
        e("v_cvt_pk_bf16_f32 v128, v128, v129\nv_cvt_pk_bf16_f32 v129, v130, v131")
        e.ds("bi", "ds_write_b64 v10, v[128:129]")
        e(f"s_lshl_b32 {T0}, {sRB}, 2\ns_add_u32 {T0}, {T0}, {sWV}\ns_lshl_b32 {T0}, {T0}, 5\ns_add_u32 {T0}, {T0}, {sJ}\ns_lshl_b32 {T0}, {T0}, 10\ns_add_u32 {T0}, {T0}, {OB}")
        e.wait(ds=0)
        e("s_barrier")
        self.stamp("B_img")
        for h in range(2):
            for s in range(2):
                e.ds(f"ba{h}", f"ds_read_b128 {vr(64+8*h+4*s)}, v12 offset:{h*1088 + s*16}")
        self.bg_flush()
        for h in range(2):
            e.wait(ds=f"ba{h}")
            for s in range(2):
                e(f"v_mfma_f32_32x32x16_bf16 {vr(80+16*h,16)}, {vr(64+8*h+4*s)}, {vr(32+8*h+4*s)}, {'0' if s == 0 else vr(80+16*h,16)}")
        for h in range(2):
            d = 80 + 16*h
            e(f"v_add_f32 v{d+8}, {f32(1e-6)}, v{d+8}\nv_rcp_f32 v{d+8}, v{d+8}")
            for i in range(4): e(f"v_pk_mul_f32 {vr(d+2*i,2)}, {vr(d+2*i,2)}, {vr(d+8,2)} op_sel_hi:[1,0]")
            for i in range(4): e(f"v_cvt_pk_bf16_f32 v{112+4*h+i}, v{d+2*i}, v{d+2*i+1}")
            e.vm("st", f"buffer_store_dwordx4 {vr(112+4*h)}, v13, {WS}, {T0} offen offset:{h*512} sc1")
        self.stamp("ost")
        e(f"s_lshl_b32 s56, {sRG}, 1\ns_add_u32 s56, s56, {sRH}\ns_lshl_b32 s56, s56, 2\ns_add_u32 s56, s56, {sWV}")
        e(f"s_lshl_b32 {T0}, s56, 14\ns_lshl_b32 {T1}, {sCB}, 7\ns_add_u32 s57, {T0}, {T1}")
        e("v_lshrrev_b32 v7, 4, v0\nv_lshlrev_b32 v7, 3, v7\nv_and_b32 v6, 15, v0\nv_lshl_add_u32 v6, v6, 10, v7")
        e(f"s_mul_i32 s59, {sM}, 224\nv_lshlrev_b32 v10, 2, v0")
        e.wait(vm="st")
        self.arrive(CNT + 4096, sRB)
        self.stamp("arr2")
        for nt in range(4):
            e.vm("res", f"buffer_load_dwordx2 {vr(48+2*nt,2)}, v6, {X}, s57 offen offset:{nt*32}")
        for nt in range(4):
            e.vm("res", f"buffer_load_dwordx2 {vr(56+2*nt,2)}, v7, {B2s}, {T1} offen offset:{nt*32}")
        e.vm("res", f"buffer_load_dword v32, v10, {B1s}, s59 offen")
        for i in range(4):
            if o[f"w1_{i}"] == "x2": self.q_w1(i)
        self.bg_flush()

    def stageC(self):
        e = self.e; o = self.opt
        NB = 24
        def buf(k):
            k %= NB
            return 64 + 4*k if k < 8 else 192 + 4*(k - 8)
        def wof(k):
            s, nt = k >> 2, k & 3
            e.ds(f"wo{k}", f"ds_read_b64_tr_b16 {vr(buf(k),2)}, v{2+nt} offset:{s*4096}")
            e.ds(f"wo{k}", f"ds_read_b64_tr_b16 {vr(buf(k)+2,2)}, v{2+nt} offset:{s*4096+1024}")
        K0 = 28
        for k in range(K0, K0 + NB): wof(k)
        self.poll(CNT + 4096, sRG)
        self.stamp("X2")
        e(f"s_lshl_b32 {T0}, s56, 14\ns_add_u32 {T0}, {T0}, {OB}\ns_lshl_b32 {T1}, s60, 10")
        def old(s):
            e(f"s_add_u32 {T2}, {T0}, {T1}")
            e.vm(f"o{s}", f"buffer_load_dwordx4 {vr(128+4*s)}, v1, {WS}, {T2} offen sc1")
            if s < 15: e(f"s_add_u32 {T1}, {T1}, 1024\ns_and_b32 {T1}, {T1}, 0x3fff")
        UP = o["c_up"]
        for s in range(UP): old(s)
        for i in range(4):
            if o[f"w1_{i}"] == "c": self.q_w1(i)
        self.q_w2(0, o["w2_c"])
        e.wait(vm="res")
        e(f"v_lshlrev_b32 v34, 16, v32\nv_and_b32 v35, 0xffff0000, v32\nv_lshlrev_b32 v7, 3, v0\nv_add_u32 v7, {B1T}, v7")
        e.ds("b1", "ds_write_b64 v7, v[34:35]")
        for i in range(8):
            e(f"v_lshlrev_b32 v{96+2*i}, 16, v{48+i}\nv_and_b32 v{97+2*i}, 0xffff0000, v{48+i}")
        for k in range(64):
            s, nt = k >> 2, k & 3
            if nt == 0: e.wait(vm=f"o{s}", ds=f"wo{k+3}" if k >= K0 else None)
            e(f"v_mfma_f32_16x16x32_bf16 {vr(16+4*nt)}, {vr(buf(k)) if k >= K0 else ar(128+4*k)}, {vr(128+4*s)}, {vr(96+4*nt) if s == 0 else vr(16+4*nt)}")
            if k >= K0 + 1 and k - 1 + NB < 64: wof(k - 1 + NB)
            if nt == 1:
                if s + UP < 16: old(s + UP)
                else: self.bg(2)
        self.bg_flush()
        for i in range(8): e(f"v_cvt_pk_bf16_f32 v{40+i}, v{16+2*i}, v{17+2*i}")
        e(f"s_lshl_b32 {T0}, s56, 4\ns_lshl_b32 {T1}, {sCB}, 1\ns_add_u32 {T0}, {T0}, {T1}\ns_lshl_b32 {T0}, {T0}, 10\ns_add_u32 {T0}, {T0}, {HB}")
        e.vm("st", f"buffer_store_dwordx4 {vr(40)}, v1, {WS}, {T0} offen sc1")
        e.vm("st", f"buffer_store_dwordx4 {vr(44)}, v1, {WS}, {T0} offen offset:1024 sc1")
        e("v_mov_b32 v32, 0\nv_mov_b32 v33, 0")
        for i in range(8): e(f"v_dot2c_f32_bf16 v32, {sONE}, v{40+i}\nv_dot2c_f32_bf16 v33, v{40+i}, v{40+i}")
        e(f"s_lshl_b32 {T0}, s56, 3\ns_add_u32 {T0}, {T0}, {sCB}\ns_lshl_b32 {T0}, {T0}, 7\ns_add_u32 {T0}, {T0}, {STATS}\nv_lshlrev_b32 v7, 3, v0")
        e("v_mov_b32 v34, v32\nv_mov_b32 v35, v33\nv_permlane32_swap_b32 v32, v34\nv_permlane32_swap_b32 v33, v35\nv_pk_add_f32 v[32:33], v[32:33], v[34:35]")
        e("v_mov_b32 v34, v32\nv_mov_b32 v35, v33\nv_permlane16_swap_b32 v32, v34\nv_permlane16_swap_b32 v33, v35\nv_pk_add_f32 v[32:33], v[32:33], v[34:35]")
        e("s_mov_b64 exec, 0xffff")
        e.vm("st", f"buffer_store_dwordx2 v[32:33], v7, {WS}, {T0} offen sc1")
        e("s_mov_b64 exec, -1")
        self.stamp("hst")
        for i in range(8):
            e(f"v_lshlrev_b32 v{64+2*i}, 16, v{40+i}\nv_and_b32 v{65+2*i}, 0xffff0000, v{40+i}\nv_lshlrev_b32 v{80+2*i}, 16, v{56+i}\nv_and_b32 v{81+2*i}, 0xffff0000, v{56+i}")
        for i in range(8): e(f"v_pk_add_f32 {vr(64+2*i,2)}, {vr(64+2*i,2)}, {vr(80+2*i,2)}")
        for i in range(16): e(f"v_accvgpr_write_b32 a{224+i}, v{64+i}")
        e(f"v_lshrrev_b32 v2, 2, v0\nv_mul_u32_u24 v2, 224, v2\nv_and_b32 v3, 3, v0\nv_lshl_add_u32 v2, v3, 3, v2\nv_add_u32 v3, {2*XW}, v2\nv_add_u32 v4, {W1L}, v2")
        e(f"s_mul_i32 {T0}, {sWV}, {XW}\nv_add_u32 v5, {T0}, v2")
        for nt in range(8): e(f"v_mov_b32 v{104+nt}, 0")
        e.wait(vm="st", ds=0)
        self.arrive(CNT + 8192, sRG)
        self.stamp("arr3")
        if o["w1_3"] == "x3": self.q_w1(3)
        self.q_w2(o["w2_c"], o["w2_x3"])
        self.bg_flush()
        for i in range(3): self.w1_colsum("v5", i*7168)
        e(f"s_lshl_b32 s58, {sRG}, 2\ns_add_u32 s58, s58, {sWV}\ns_lshl_b32 s58, s58, 1")
        e("v_lshlrev_b32 v7, 3, v0\nv_add_u32 v10, 16384, v1")

    def w1_colsum(self, va, off):
        e = self.e
        for nt in range(7):
            e.ds(f"c{nt}", f"ds_read_b64_tr_b16 {vr(72+4*nt,2)}, {va} offset:{off + nt*32}")
            e.ds(f"c{nt}", f"ds_read_b64_tr_b16 {vr(74+4*nt,2)}, {va} offset:{off + nt*32 + 3584}")
        e.wait(ds="c3")
        for r in range(4):
            for nt in range(4): e(f"v_dot2c_f32_bf16 v{104+nt}, {sONE}, v{72+4*nt+r}")
        e.wait(ds="c6")
        for r in range(4):
            for nt in range(4, 7): e(f"v_dot2c_f32_bf16 v{104+nt}, {sONE}, v{72+4*nt+r}")

    def stageD(self):
        e = self.e; o = self.opt
        self.poll(CNT + 8192, sRG)
        self.stamp("X3")
        e(f"s_lshl_b32 {T0}, s58, 14\ns_add_u32 {T0}, {T0}, {HB}\ns_lshl_b32 {T1}, s61, 10")
        def hld(s):
            e(f"s_add_u32 {T2}, {T0}, {T1}")
            e.vm(f"h{s}", f"buffer_load_dwordx4 {vr(128+8*s)}, v1, {WS}, {T2} offen sc1")
            e.vm(f"h{s}", f"buffer_load_dwordx4 {vr(132+8*s)}, v10, {WS}, {T2} offen sc1")
            if s < 15: e(f"s_add_u32 {T1}, {T1}, 1024\ns_and_b32 {T1}, {T1}, 0x3fff")
        UP = o["d_up"]
        for s in range(UP): hld(s)
        e(f"s_lshl_b32 {T3}, s58, 10\ns_add_u32 {T3}, {T3}, {STATS}")
        for tt in range(2):
            for k in range(2):
                e.vm("stat", f"buffer_load_dwordx2 {vr(112+4*tt+2*k,2)}, v7, {WS}, {T3} offen offset:{tt*1024 + k*512} sc1")
        self.stamp("D_iss")
        e.wait(vm="w1_3")
        e(f"s_mul_i32 {T3}, {sWV}, 7168\nv_add_u32 v5, {T3}, v4")
        self.w1_colsum("v5", 0)
        e(f"s_lshl_b32 {T3}, {sWV}, 2\ns_add_u32 {T3}, {T3}, {PT}")
        e(f"v_bfe_u32 v5, v0, 4, 1\nv_lshlrev_b32 v5, 9, v5\nv_lshrrev_b32 v8, 5, v0\nv_lshl_add_u32 v5, v8, 8, v5\nv_and_b32 v8, 15, v0\nv_lshl_add_u32 v5, v8, 4, v5\nv_add_u32 v5, {T3}, v5")
        for b in (104, 106, 108, 110): e(f"v_permlane32_swap_b32 v{b}, v{b+1}")
        for b in (104, 106, 108, 110): e(f"v_add_f32 v{b}, v{b}, v{b+1}")
        for b in (104, 108): e(f"v_permlane16_swap_b32 v{b}, v{b+2}")
        for b in (104, 108): e(f"v_add_f32 v{b}, v{b}, v{b+2}")
        e.ds("ptw", "ds_write_b32 v5, v104")
        e.ds("ptw", "ds_write_b32 v5, v108 offset:1024")
        e.wait(ds=0)
        e("s_barrier")
        self.stamp("D_bar")
        def w1f(k):
            s, nt = divmod(k, 7); b = 72 + 4*(k % 8)
            w, i = s & 3, s >> 2
            va, off = ("v4", w*7168) if i == 3 else ("v2", w*XW + i*7168) if w < 2 else ("v3", (w-2)*XW + i*7168)
            e.ds(f"w1{k}", f"ds_read_b64_tr_b16 {vr(b,2)}, {va} offset:{off + nt*32}")
            e.ds(f"w1{k}", f"ds_read_b64_tr_b16 {vr(b+2,2)}, {va} offset:{off + nt*32 + 3584}")
        LA = 6
        self.table_from_partials(0, CS1, 104, "v5", "v8")
        self.table_from_partials(1024, CS1 + 256, 104, "v5", "v8")
        for k in range(LA): w1f(k)
        self.q_w2(o["w2_x3"], 14)
        def stats():
            L = []
            for tt in range(2):
                b = 112 + 4*tt
                L += [f"v_add_f32 v{b}, v{b}, v{b+2}", f"v_add_f32 v{b+1}, v{b+1}, v{b+3}"]
                for sw in ("32", "16"):
                    L += [f"v_mov_b32 v{b+2}, v{b}", f"v_mov_b32 v{b+3}, v{b+1}", "s_nop 0", f"v_permlane{sw}_swap_b32 v{b}, v{b+2}", f"v_permlane{sw}_swap_b32 v{b+1}, v{b+3}",
                          f"v_add_f32 v{b}, v{b}, v{b+2}", f"v_add_f32 v{b+1}, v{b+1}, v{b+3}"]
                L += [f"v_mul_f32 v{b}, {f32(-1/512)}, v{b}", f"v_mul_f32 v{b+1}, {f32(1/512)}, v{b+1}",
                      f"v_fma_f32 v{b+1}, -v{b}, v{b}, v{b+1}", f"v_max_f32 v{b+1}, 0, v{b+1}", f"v_add_f32 v{b+1}, {f32(1e-5)}, v{b+1}", f"v_rsq_f32 v{120+4*tt}, v{b+1}",
                      "s_nop 0", f"v_mul_f32 v{122+4*tt}, v{b}, v{120+4*tt}"]
            return [l for l in L if l != "s_nop 0"]
        SL = stats()
        for k in range(112):
            s, nt = divmod(k, 7)
            if k % 2 == 0 or nt == 0:
                e.wait(vm=f"h{s}" if nt == 0 else None, ds=f"w1{min(k+1, 111)}" if k % 2 == 0 else None)
            for tt in range(2):
                a = 16 + (tt*7 + nt)*4
                e(f"v_mfma_f32_16x16x32_bf16 {vr(a)}, {vr(72+4*(k%8))}, {vr(128+8*s+4*tt)}, {'0' if s == 0 else vr(a)}")
            if k + LA < 112: w1f(k + LA)
            if nt == 1 and s + UP < 16: hld(s + UP)
            elif s + UP >= 16 and nt in o["d_bg"]: self.bg(1)
            if s == 12 and nt == 0: e.wait(vm="stat")
            if s >= 12 and SL:
                e(SL.pop(0));
                if SL: e(SL.pop(0))
            if nt == 0: self.stamp(f"D_s{s}")
        assert not SL
        self.stamp("F1")
        e(f"v_lshrrev_b32 v5, 4, v0\nv_lshlrev_b32 v5, 4, v5\nv_add_u32 v5, {CS1}, v5")
        for nt in range(7):
            e.ds(f"t{nt}", f"ds_read_b128 {vr(128+8*nt)}, v5 offset:{nt*64}")
            e.ds(f"t{nt}", f"ds_read_b128 {vr(132+8*nt)}, v5 offset:{512 + nt*64}")
        k1 = -2.0 * math.sqrt(2.0 / math.pi) * LOG2E
        e(f"s_mov_b32 {T2}, {f32(k1*0.044715)}\ns_mov_b32 {T3}, {f32(k1)}\nv_mov_b32 v110, {T3}")
        e(f"s_lshr_b32 {T0}, {sM}, 1\ns_mul_i32 {T0}, {T0}, 7\ns_mul_i32 {T1}, s58, 56\ns_add_u32 {T0}, {T0}, {T1}\ns_lshl_b32 {T0}, {T0}, 10\ns_add_u32 {T0}, {T0}, {ACT}")
        e(f"s_and_b32 {T1}, {sM}, 1\ns_lshl_b32 s59, {T1}, 12\ns_add_u32 s59, s59, {T0}\ns_lshl_b32 {T1}, {T1}, 3\ns_add_u32 {T1}, {T1}, {T0}\ns_add_u32 {T1}, {T1}, 3072")
        e(f"v_add_u32 v8, {56*1024}, v1")
        order = [6, 0, 1, 2, 3, 4, 5]
        for nt in order:
            e.wait(ds=f"t{nt}")
            cs, b1 = 128 + 8*nt, 132 + 8*nt
            U = [16 + (tt*7 + nt)*4 + 2*k for tt in range(2) for k in range(2)]
            TT = [0, 0, 1, 1]; KK = [0, 1, 0, 1]
            W = [192 + 2*i for i in range(4)]
            L = []
            for i in range(4): L.append(f"v_pk_fma_f32 {vr(W[i],2)}, {vr(cs+2*KK[i],2)}, {vr(122+4*TT[i],2)}, {vr(b1+2*KK[i],2)} op_sel_hi:[1,0,1]")
            for i in range(4): L.append(f"v_pk_fma_f32 {vr(U[i],2)}, {vr(U[i],2)}, {vr(120+4*TT[i],2)}, {vr(W[i],2)} op_sel_hi:[1,0,1]")
            for i in range(4): L.append(f"v_pk_mul_f32 {vr(W[i],2)}, {vr(U[i],2)}, {vr(U[i],2)}")
            for i in range(4): L.append(f"v_pk_fma_f32 {vr(W[i],2)}, {vr(W[i],2)}, s[74:75], v[110:111] op_sel_hi:[1,0,0]")
            for i in range(4): L.append(f"v_pk_mul_f32 {vr(W[i],2)}, {vr(W[i],2)}, {vr(U[i],2)}")
            for i in range(8): L.append(f"v_exp_f32 v{192+i}, v{192+i}")
            for i in range(4): L.append(f"v_pk_add_f32 {vr(W[i],2)}, {vr(W[i],2)}, 1.0 op_sel_hi:[1,0]")
            for i in range(8): L.append(f"v_rcp_f32 v{192+i}, v{192+i}")
            for i in range(4): L.append(f"v_pk_mul_f32 {vr(U[i],2)}, {vr(U[i],2)}, {vr(W[i],2)}")
            pb = 200 + 8*((nt >> 1) & 1)
            for i in range(4): L.append(f"v_cvt_pk_bf16_f32 v{pb + 4*TT[i] + 2*(nt&1) + KK[i]}, v{U[i]}, v{U[i]+1}")
            self.lines(L, o["g_every"])
            if nt == 4: self.bg_flush()
            if nt & 1:
                for tt in range(2):
                    e.vm("st", f"buffer_store_dwordx4 {vr(pb+4*tt)}, {'v8' if tt else 'v1'}, {WS}, s59 offen offset:{(nt>>1)*1024} sc1")
            if nt == 6:
                for tt in range(2):
                    e.vm("st", f"buffer_store_dwordx2 {vr(pb+4*tt,2)}, {'v8' if tt else 'v1'}, {WS}, {T1} offen sc1")
        self.stamp("actst")
        e(f"s_lshl_b32 {T0}, {sRG}, 1\ns_add_u32 {T0}, {T0}, {sRH}\ns_lshl_b32 {T0}, {T0}, 2")
        for i in range(4):
            e(f"s_add_u32 {T1}, {sWV}, {1+i}\ns_and_b32 {T1}, {T1}, 3")
            if i < 3: e(f"s_mul_i32 {T2}, {T1}, {3*4096}\ns_add_u32 {T2}, {T2}, {RED + i*4096}\nv_add_u32 v{9+i}, {T2}, v1")
            e(f"s_add_u32 {T1}, {T1}, {T0}\ns_mul_i32 {T1}, {T1}, 56\ns_mul_i32 {T2}, {sWV}, 14\ns_add_u32 {T1}, {T1}, {T2}\ns_lshl_b32 {T1}, {T1}, 10\ns_add_u32 {T1}, {T1}, {ACT}\nv_add_u32 v{2+i}, {T1}, v1")
        e(f"s_mul_i32 {T2}, {sWV}, {3*4096}\ns_add_u32 {T2}, {T2}, {RED}\nv_add_u32 v12, {T2}, v1")
        e.wait(vm="st")
        self.arrive(CNT + 12288, sRG)
        self.stamp("arr4")

    def stageE(self):
        e = self.e; o = self.opt
        self.poll(CNT + 12288, sRG)
        self.stamp("X4")
        def bufa(n): return 128 + 4*(n % 28)
        def ld(n):
            i, sp = divmod(n, 14)
            e.vm(f"a{n}", f"buffer_load_dwordx4 {vr(bufa(n))}, v{2+i}, {WS}, {self.sE(sp)} offen sc1")
        UP = o["e_up"]
        for n in range(UP): ld(n)
        for n in range(56):
            i, sp = divmod(n, 14)
            e.wait(vm=f"a{n}")
            b = vr(bufa(n))
            for nt in range(4):
                if i < 3:
                    a = vr(16 + 16*i + 4*nt)
                    e(f"v_mfma_f32_16x16x32_bf16 {a}, {ar(16*sp+4*nt)}, {b}, {'0' if sp == 0 else a}")
                else:
                    a = ar(224 + 4*nt)
                    e(f"v_mfma_f32_16x16x32_bf16 {a}, {ar(16*sp+4*nt)}, {b}, {a}")
                if nt == 0 and n + UP < 56: ld(n + UP)
            if i >= 1 and 2 <= sp < 6:
                nt = sp - 2
                e.ds("red", f"ds_write_b128 v{9+i-1}, {vr(16 + 16*(i-1) + 4*nt)} offset:{nt*1024}")
            if i == 3 and sp == 8:
                e.wait(ds=0)
                e("s_barrier")
            if i == 3 and 9 <= sp < 12:
                k = sp - 9
                for nt in range(4):
                    e.ds("rr", f"ds_read_b128 {vr(64 + 16*k + 4*nt)}, v12 offset:{k*4096 + nt*1024}")
            if sp == 13: self.stamp(f"E_{i}")
        e.wait(ds=0)
        for i in range(16): e(f"v_add_f32 v{64+i}, v{64+i}, v{80+i}") if i < 8 else None
        for i in range(4, 8): e(f"v_pk_add_f32 {vr(64+2*i,2)}, {vr(64+2*i,2)}, {vr(80+2*i,2)}")
        for i in range(8): e(f"v_pk_add_f32 {vr(64+2*i,2)}, {vr(64+2*i,2)}, {vr(96+2*i,2)}")
        for i in range(16): e(f"v_accvgpr_read_b32 v{16+i}, a{224+i}")
        for nt in range(4):
            for k in range(2): e(f"v_pk_add_f32 {vr(16+4*nt+2*k,2)}, {vr(16+4*nt+2*k,2)}, {vr(64+4*nt+2*k,2)}")
            for k in range(2): e(f"v_cvt_pk_bf16_f32 v{32+2*nt+k}, v{16+4*nt+2*k}, v{17+4*nt+2*k}")
            e.vm("out", f"buffer_store_dwordx2 {vr(32+2*nt,2)}, v6, {OUT}, s57 offen offset:{nt*32} {o['out_flags']}")
        self.stamp("end")

    def write_stamps(self):
        e = self.e
        e(f"s_lshl_b32 {T0}, s2, 2\ns_add_u32 {T0}, {T0}, {sWV}\ns_lshl_b32 {T0}, {T0}, 7\ns_add_u32 {T0}, {T0}, {DIAG}")
        e("s_mov_b64 exec, 1")
        e(f"v_mov_b32 v1, s78\nbuffer_store_dword v1, off, {WS}, {T0}")
        for i in range(self.nst):
            e(f"v_mov_b32 v1, s{80+i}\nbuffer_store_dword v1, off, {WS}, {T0} offset:{4+4*i}")

    def build(self):
        e = self.e
        self.prologue()
        for nm, f in [("A", self.stageA), ("B", self.stageB), ("C", self.stageC), ("D", self.stageD), ("E", self.stageE)]:
            e(f"; ======================= stage {nm}")
            f()
            if self.stop == nm: break
        if self.diag: self.write_stamps()
        e("L_end:\ns_endpgm")
        body, added = e.text()
        hdr = open("cdna_kernels/" + NAME + ".s.ref").read().split("; Override launch")[0]
        k = NAME + "_kernel"
        if self.diag: hdr += "; stamps: start," + ",".join(self.stnames) + "\n"
        s = hdr + f"; @launch grid=(256,1,1) block=(256,1,1) lds={LDS_BYTES}\n"
        s += '.amdgcn_target "amdgcn-amd-amdhsa--gfx950"\n.text\n'
        s += f".globl {k}\n.p2align 8\n.type {k},@function\n{k}:\n" + body
        s += f""".section .rodata,"a"
.p2align 6
.amdhsa_kernel {k}
  .amdhsa_next_free_vgpr 512
  .amdhsa_next_free_sgpr 102
  .amdhsa_accum_offset 256
  .amdhsa_group_segment_fixed_size 0
  .amdhsa_kernarg_size 96
  .amdhsa_user_sgpr_count 2
  .amdhsa_user_sgpr_kernarg_segment_ptr 1
  .amdhsa_system_sgpr_workgroup_id_x 1
  .amdhsa_float_denorm_mode_32 3
.end_amdhsa_kernel
"""
        return s, added

if __name__ == "__main__":
    import argparse
    ap = argparse.ArgumentParser()
    ap.add_argument("-o", default="cdna_kernels/" + NAME + ".s")
    ap.add_argument("--diag", nargs="?", const="W0,A_p4,KVgemm,kvst,arr1,phiq,X1,ost,X2,hst,X3,F1,actst,X4,end")
    ap.add_argument("--stop")
    ap.add_argument("--opt", action="append", default=[])
    a = ap.parse_args()
    opt = {}
    for o in a.opt:
        k, v = o.split("="); opt[k] = eval(v)
    s, added = Gen(a.diag.split(',') if a.diag else None, a.stop, opt).build()
    open(a.o, "w").write(s)
    print("wrote", a.o, len(s), "bytes; nops added:", added)
```
